```python
import torch

def _softmax(x, axis=-1):
    return torch.softmax(x, dim=axis)

def _gelu(x):
    return torch.nn.functional.gelu(x, approximate='tanh')

def _silu(x):
    return torch.nn.functional.silu(x)

def _sigmoid(x):
    return torch.sigmoid(x)

def _layernorm(x, axis=-1, eps=1e-05):
    m = x.mean(dim=axis, keepdim=True)
    v = x.var(dim=axis, keepdim=True, unbiased=False)
    return (x - m) / torch.sqrt(v + eps)

def _scatter_add(tgt, idx, src, axis=0):
    return tgt.clone().index_add_(axis, idx, src)

def _segment_sum(src, seg, n):
    out = torch.zeros((n,) + src.shape[1:], dtype=src.dtype)
    return out.index_add_(0, seg, src)

def _pad(x, pw):
    flat = tuple((v for pair in reversed(pw) for v in pair))
    return torch.nn.functional.pad(x, flat)
kernel_name = 'adaLN_cond__compressed_kv_cla__mixer_gmlp__prompt'

def setup_inputs():

    _w = lambda a: (lambda t: t.to(torch.bfloat16) if t.is_floating_point() else t)(torch.as_tensor(a))

    def _A_setup():
        B, H, Sq, Sk, D, M = (1, 32, 2048, 2048, 128, 640)
        Dc = 4 * D
        return {'x': _w((lambda *s: torch.randn(*s, dtype=torch.bfloat16) * 0.05)(B, Sq, M)), 'c_kv': _w((lambda *s: torch.randn(*s, dtype=torch.bfloat16) * 1.6)(B, Sk, Dc)), 'w_q': _w((lambda *s: torch.randn(*s, dtype=torch.bfloat16) * 0.8)(M, H, D) * M ** (-0.5)), 'w_uk': _w((lambda *s: torch.randn(*s, dtype=torch.bfloat16) * 0.8)(Dc, H, D) * Dc ** (-0.5)), 'w_uv': _w((lambda *s: torch.randn(*s, dtype=torch.bfloat16) * 1.6)(Dc, H, D) * Dc ** (-0.5)), 'w_o': _w((lambda *s: torch.randn(*s, dtype=torch.bfloat16) * 1.6)(H, D, M) * (H * D) ** (-0.5))}
    _A_in = _A_setup()

    def _B_setup():
        B, S, D, F = (1, 2048, 640, 1728)
        Fh = F // 2
        return {'x': _w((lambda *s: torch.randn(*s, dtype=torch.bfloat16) * 0.05)(B, S, D)), 'w_in': _w((lambda *s: torch.randn(*s, dtype=torch.bfloat16) * 0.4)(D, 2 * Fh)), 'w_sp': _w(0.01 * (lambda *s: torch.randn(*s, dtype=torch.bfloat16) * 0.4)(S, S)), 'b_sp': _w(1.0 + 0.01 * (lambda *s: torch.randn(*s, dtype=torch.bfloat16) * 0.05)(S)), 'w_out': _w((lambda *s: torch.randn(*s, dtype=torch.bfloat16) * 0.05)(Fh, D))}
    _B_in = _B_setup()
    return {'A_x': _A_in['x'], 'A_c_kv': _A_in['c_kv'], 'A_w_q': _A_in['w_q'], 'A_w_uk': _A_in['w_uk'], 'A_w_uv': _A_in['w_uv'], 'A_w_o': _A_in['w_o'], 'B_x': _B_in['x'], 'B_w_in': _B_in['w_in'], 'B_w_sp': _B_in['w_sp'], 'B_b_sp': _B_in['b_sp'], 'B_w_out': _B_in['w_out'], 'c': _w((lambda *s: torch.randn(*s, dtype=torch.bfloat16) * 0.1)(1, 640) * 8.0), 'w_mod': _w((lambda *s: torch.randn(*s, dtype=torch.bfloat16) * 0.1)(640, 6 * 640) * 640 ** (-0.5) * 8.0)}

def reference(A_x, A_c_kv, A_w_q, A_w_uk, A_w_uv, A_w_o, B_x, B_w_in, B_w_sp, B_b_sp, B_w_out, c, w_mod):

    def _A_ref(x, c_kv, w_q, w_uk, w_uv, w_o):
        B, Sq, M = (x.shape[0], x.shape[1], x.shape[2])
        Sk = c_kv.shape[1]
        H, D = (w_q.shape[1], w_q.shape[2])
        q = torch.einsum('bqm,mhd->bhqd', x, w_q)
        k = torch.einsum('bkc,chd->bhkd', c_kv, w_uk)
        v = torch.einsum('bkc,chd->bhkd', c_kv, w_uv)
        scores = torch.einsum('bhqd,bhkd->bhqk', q, k) * D ** (-0.5)
        off = Sk - Sq
        qi = torch.arange(Sq)[:, None]
        kj = torch.arange(Sk)[None, :]
        cmask = kj <= qi + off
        scores = torch.where(cmask[None, None], scores, -1000000000.0)
        p = _softmax(scores, axis=-1)
        ctx = torch.einsum('bhqk,bhkd->bhqd', p, v)
        return torch.einsum('bhqd,hdm->bqm', ctx, w_o)

    def _B_ref(x, w_in, w_sp, b_sp, w_out):
        B, S, D = x.shape
        F = w_in.shape[-1]
        Fh = F // 2
        z = _gelu(torch.einsum('bsd,df->bsf', x, w_in))
        z1 = z[..., :Fh].clone()
        z2 = _layernorm(z[..., Fh:], axis=-1)
        g = torch.einsum('ts,bsf->btf', w_sp, z2) + b_sp[None, :, None]
        return torch.einsum('bsf,fd->bsd', z1 * g, w_out)
    x = A_x
    mod = (_silu(c) @ w_mod).reshape(c.shape[0], 6, 1, -1)
    sa, ca, ga, sb, cb, gb = (mod[:, 0].clone(), mod[:, 1].clone(), mod[:, 2].clone(), mod[:, 3].clone(), mod[:, 4].clone(), mod[:, 5].clone())
    h = _layernorm(x, axis=-1) * (1 + ca) + sa
    x = x + ga * _A_ref(h, A_c_kv, A_w_q, A_w_uk, A_w_uv, A_w_o)
    h = _layernorm(x, axis=-1) * (1 + cb) + sb
    x = x + gb * _B_ref(h, B_w_in, B_w_sp, B_b_sp, B_w_out)
    return x
```

```python
from core import *
from small import prologue

S_, CB, P_, Q_, E_ = 0, 64, 96, 128, 192
L0, L1, TS0, TS1, VK, VV, LN16, VREL, T0 = 224, 225, 226, 227, 228, 230, 231, 232, 234
VW, VD = 244, 248
O_, FR = 256, 256 + 128
D = 6
THR = 2.0 ** 24
BIG = 2.0 ** 100
SH0, SH1, SD, SK, SV, SC = 12, 16, 20, 24, 28, 32
sG, sH, sIT, sHO, sHO2, sDO, sDM, sDS, sW0, sW1, sW2, sKW, sVW, sN, sT, sDA, sDB, sTHR, sND, sX = range(40, 60)

def Sreg(p, u): return S_ + p*32 + u*16
def Preg(p, u, kh): return P_ + p*16 + u*8 + kh*4
def Ereg(u, r): return E_ + (r >> 3)*16 + u*8 + (r & 7)

def sm_ops(p):
    ops, late = [], []
    pend = []
    for kh in range(2):
        for u in range(2):
            ts = TS0 + u
            for e in range(8):
                r = kh*8 + e
                ops.append((2, f"v_exp_f32 v{Ereg(u,r)}, v{Sreg(p,u)+r}"))
                ops += pend; pend = []
                if r == 1: pend.append((1, f"v_add_f32 v{ts}, v{Ereg(u,0)}, v{Ereg(u,1)}"))
                elif r > 1: pend.append((1, f"v_add_f32 v{ts}, v{ts}, v{Ereg(u,r)}"))
                if e & 1:
                    c = (1, f"v_cvt_pk_bf16_f32 v{Preg(p,u,kh)+(e>>1)}, v{Ereg(u,r-1)}, v{Ereg(u,r)}")
                    (pend if kh == 0 else late).append(c)
    ops.append((1, "s_nop 0"))
    ops += pend
    ops.append((1, f"v_max_f32 v{T0}, v{TS0}, v{TS1}"))
    ops.append((1, f"v_cmp_nge_f32 vcc, s{sTHR}, v{T0}"))
    return ops, late
NFIRST = 31

def kread(g, mode, reg):
    ks, u = g >> 1, g & 1
    if mode == 'D' and u: return None
    return f"ds_read_b128 {R(FR+4*g,4)}, v{reg} offset:{u*8192 + ks*1024}"
def vread(g, mode):
    fi, u = g >> 1, g & 1
    if mode == 'D' and u: return None
    return f"ds_read_b128 {R(FR+4*g,4)}, v{VV} offset:{u*8192 + fi*1024}"
def qk_mfma(g, mode, p):
    ks, u = g >> 1, g & 1
    fr = FR + 4*(g if mode == 'S' else g & ~1)
    q = Q_ + (u if mode == 'D' else 1)*32 + ks*4
    return mfma32(Sreg(p, u), fr, q, CB + u*16 if ks == 0 else None)
def pv_mfma(g, mode, p):
    fi, u = g >> 1, g & 1
    kh, db = fi >> 2, fi & 3
    fr = FR + 4*(g if mode == 'S' else g & ~1)
    o = O_ + (u if mode == 'D' else 1)*64 + db*16
    return mfma32(o, fr, Preg(p, u, kh))

def dma_ops(mk, mv):
    out = []
    nv = 2 if mv == 'D' else 4
    for i in range(nv):
        sc = [f"s_and_b32 m0, s{sVW}, 0xffff", "s_bitset1_b32 m0, 16"] if i == 0 else []
        post = [f"s_add_u32 s{sVW}, s{sVW}, {nv*4096}"] if i == nv-1 else []
        out.append((sc, f"buffer_load_dwordx4 v{LN16}, {s(SV,4)}, s{sVW} offen offset:{1024*i} lds", post))
    nk = 2 if mk == 'D' else 4
    for i in range(nk):
        sc = [f"s_and_b32 m0, s{sKW}, 0xffff"] if i == 0 else []
        post = [f"s_add_u32 s{sKW}, s{sKW}, {nk*4096}"] if i == nk-1 else []
        out.append((sc, f"buffer_load_dwordx4 v{LN16}, {s(SK,4)}, s{sKW} offen offset:{1024*i} lds", post))
    return out

def mask_unit(k, u, srel):
    k(f"v_add_u32 v{T0}, s{srel}, v{VREL}\nv_cvt_f32_i32 v{T0}, v{T0}\nv_add_f32 v{T0}, 0.5, v{T0}\nv_mul_f32 v{T0}, {fl(BIG)}, v{T0}")
    for r in range(16):
        kvl = (r & 3) + 8*(r >> 2)
        t = T0 + 1 + (r & 3)
        k(f"v_subrev_f32 v{t}, {fl(kvl*BIG)}, v{T0}" if kvl else f"v_mov_b32 v{t}, v{T0}")
        k(f"v_min_f32 v{CB+u*16+r}, v{CB+u*16+r}, v{t}")

def row_max(k, dst, base):
    k(f"v_max3_f32 v{dst}, v{base}, v{base+1}, v{base+2}")
    for r in range(3, 15, 2): k(f"v_max3_f32 v{dst}, v{dst}, v{base+r}, v{base+r+1}")
    k(f"v_max_f32 v{dst}, v{dst}, v{base+15}\nv_mov_b32 v{T0+7}, v{dst}\ns_nop 1\nv_permlane32_swap_b32 v{dst}, v{T0+7}\ns_nop 1\nv_max_f32 v{dst}, v{dst}, v{T0+7}")

def fallback(k, lab, back, mq, mp, p):
    D0, F0 = T0 + 1, T0 + 3
    k(f"{lab}:\ns_nop 15")
    for u in range(2):
        row_max(k, D0+u, Sreg(p, u)); k(f"v_max_f32 v{D0+u}, 0, v{D0+u}")
    if mp == 'S': k(f"v_max_f32 v{D0}, v{D0}, v{D0+1}\nv_mov_b32 v{D0+1}, v{D0}")
    for u in range(2): k(f"v_exp_f32 v{F0+u}, -v{D0+u}")
    for u in range(2):
        for r in range(16): k(f"v_sub_f32 v{Sreg(p,u)+r}, v{Sreg(p,u)+r}, v{D0+u}")
    for c, x in sm_ops(p)[0][:-2]: k(x)
    if mq:
        for u in range(2):
            d = D0 + (u if mq == 'D' else 1)
            for r in range(16): k(f"v_sub_f32 v{Sreg(1-p,u)+r}, v{Sreg(1-p,u)+r}, v{d}\nv_sub_f32 v{CB+u*16+r}, v{CB+u*16+r}, v{d}")
    for u in ((0, 1) if mp == 'D' else (1,)):
        k(f"v_mul_f32 v{L0+u}, v{L0+u}, v{F0+u}")
        for r in range(0, 64, 2):
            o = u*64 + r
            k(f"v_accvgpr_read_b32 v{T0+5}, a{o}\nv_accvgpr_read_b32 v{T0+6}, a{o+1}\nv_mul_f32 v{T0+5}, v{T0+5}, v{F0+u}\nv_mul_f32 v{T0+6}, v{T0+6}, v{F0+u}\nv_accvgpr_write_b32 a{o}, v{T0+5}\nv_accvgpr_write_b32 a{o+1}, v{T0+6}")
    k(f"s_nop 2\ns_branch {back}")

def body(k, mq, mp, p, tailcode, later):
    ops_cur, late = sm_ops(p)
    ops_nxt, _ = sm_ops(1-p)
    second, first = ops_cur[NFIRST:], ops_nxt[:NFIRST]
    lab, back = k.label("fb"), k.label("back")
    later.append(lambda: fallback(k, lab, back, mq, mp, p))
    dq = dma_ops(mq, mp)
    step = 8192 if mq == 'D' else 16384
    tick = {}
    n0 = sum(kread(g, mq, 0) is not None for g in range(D))
    i = 0
    for g in range(D):
        if kread(g, mq, 0) is not None:
            i += 1; tick[g] = k.lg - n0 + i
    ladd = [(1, f"v_add_f32 v{L0 + (0 if mp == 'D' else 1)}, v{L0 + (0 if mp == 'D' else 1)}, v{TS0}"), (1, f"v_add_f32 v{L1}, v{L1}, v{TS1}")]
    misc = [(1, f"v_add_u32 v{VK+p}, {step}, v{VK+1-p}"), (1, f"v_and_b32 v{VK+p}, 0xffff, v{VK+p}")]
    post = []
    pos_last_qk = {}
    for g in range(32):
        k(qk_mfma(g, mq, 1-p) if g < 16 else pv_mfma(g-16, mp, p))
        if g in (14, 15): pos_last_qk[g & 1] = len(k.L)
        used = -1
        sc, mem = [], []
        if g == 15: k(f"s_cbranch_vccnz {lab}\n{back}:"); used += 1
        if g & 1:
            need = [tick[x] for x in (g+1, g+2) if x in tick]
            if need: k.wait_lg(max(need)); used += 1
        if g == 16: k("s_waitcnt vmcnt(8)\ns_barrier"); used += 2
        for x in post: k(x); used += 1
        post = []
        d = None
        if dq and g >= 17:
            d = dq.pop(0)
            for x in d[0]: k(x); used += 1
        used = max(used, 0)
        gg = g + D
        rd = kread(gg, mq, VK+1-p) if gg < 16 else vread(gg-16, mp) if gg < 32 else kread(gg-32, mq, VK+p)
        if rd:
            k(rd); tick[gg] = k.lg; used += 1
        elif d and d[0]: k("s_nop 0"); used += 1
        if d: k(d[1]); post = d[2]; used += 1
        if g == 31:
            for x in tailcode: k(x); used += 1
        if g < 15:
            q = second; tgt = -(-sum(c for c, _ in q) // (15 - g))
        elif g < 19:
            if g == 15: q15 = ladd + late + misc
            q = q15; tgt = 6
            if g == 15: tgt = 2
        else:
            q = first; tgt = -(-sum(c for c, _ in q) // (32 - g))
            if g == 19:
                assert not q15, q15
                assert len(k.L) - pos_last_qk[1] >= 13
        n = 0
        if g == 26: k(f"v_add_u32 v{VV}, 0x10000, v{VK+1-p}"); used += 1
        while q and n < tgt and (used + n + q[0][0] <= 6 or g in (14, 31, 18)):
            c, x = q.pop(0); k(x); n += c
    assert not second and not first and not dq and not post, (second, first, dq)

def k_attn():
    k = Kern("attn", 256, lds=163840, vgpr=256, agpr=256)
    end = prologue(k, 256, dict(wq=4, ws=6))
    later = []
    k(f"s_and_b32 s{sH}, s2, 7\ns_lshl_b32 s{sH}, s{sH}, 2\ns_bfe_u32 s{sX}, s2, 0x20003\ns_add_u32 s{sH}, s{sH}, s{sX}\ns_lshr_b32 s{sG}, s2, 5")
    k(f"s_lshl_b32 s{sND}, s{sG}, 2\ns_add_u32 s{sDA}, s{sND}, s3\ns_sub_u32 s{sDB}, 60, s{sND}\ns_add_u32 s{sDB}, s{sDB}, s3")
    for u, (sr, sd) in enumerate(((SH0, sDA), (SH1, sDB))):
        k(f"s_mul_i32 s{sX}, s{sd}, 40960\ns_add_u32 s{sX}, s{sX}, {WS['H']}"); k.srd(sr, 6, 40960, f"s{sX}")
    k(f"s_lshl_b32 s{sX}, s{sH}, 8\ns_sub_u32 s{sT}, {SZ['wq']}, s{sX}"); k.srd(SD, 4, f"s{sT}", f"s{sX}")
    k(f"""v_lshlrev_b32 v{LN16}, 4, v1
    v_bfe_u32 v{T0}, v1, 2, 2
    v_and_b32 v{T0+1}, 3, v1
    v_lshrrev_b32 v{T0+2}, 4, v1
    v_lshlrev_b32 v{T0+3}, 4, v{T0+1}
    v_lshl_add_u32 v{T0+3}, v{T0}, 13, v{T0+3}
    v_lshl_add_u32 v{T0+3}, v{T0+2}, 6, v{T0+3}""")
    for j in range(4): k(f"v_add_u32 v{VD+j}, {j*(32768-1024)}, v{T0+3}")
    k(f"s_lshl_b32 s{sX}, s3, 13\ns_add_u32 s{sDM}, s{sX}, 32768\ns_lshl_b32 s{sDO}, s3, 18\ns_mov_b32 s{sDS}, {16*8192}")
    k(f"s_mov_b32 s{sW0}, 32768\ns_mov_b32 s{sW1}, 98304\ns_mov_b32 s{sW2}, 131072")
    def wdma(i):
        sc = []
        if i == 0: sc = [f"s_mov_b32 m0, s{sDM}"]
        if i == 4: sc = [f"s_add_u32 m0, s{sDM}, 4096", f"s_add_u32 s{sDO}, s{sDO}, s{sDS}"]
        return sc, f"buffer_load_dwordx4 v{VD+(i&3)}, {s(SD,4)}, s{sDO} offen offset:{1024*(i&3)} lds"
    def hload(ks, u): return f"buffer_load_dwordx4 {R(FR+(ks*2+u)*4,4)}, v{LN16}, {s(SH0+4*u,4)}, s{sHO if ks < 4 else sHO2} offen offset:{1024*(ks&3)}"
    for i in range(8):
        sc, op = wdma(i)
        for x in sc: k(x)
        if i == 0: k("s_nop 0")
        k(op)
    tw0 = k.vm
    k(f"s_add_u32 s{sDO}, s{sDO}, {(128-16)*8192}\ns_add_u32 s{sDM}, s{sX}, 98304\ns_mov_b32 s{sHO}, 0\ns_movk_i32 s{sHO2}, 4096")
    seq = []
    for ks in range(8):
        seq.append(("h", ks, 0))
        if ks < 4: seq += [("w", 2*ks), ("w", 2*ks+1)]
        seq.append(("h", ks, 1))
    for e in seq:
        if e[0] == "h": k(hload(e[1], e[2]))
        else:
            sc, op = wdma(e[1])
            for x in sc: k(x)
            if e[1] == 0: k("s_nop 0")
            k(op)
    k(f"s_add_u32 s{sDO}, s{sDO}, {(128-16)*8192}\ns_add_u32 s{sDM}, s{sX}, 131072\ns_movk_i32 s{sHO}, 8192\ns_movk_i32 s{sHO2}, 12288")
    k(f"s_lshl_b32 s{sT}, s{sH}, 19\ns_add_u32 s{sN}, s{sT}, {WS['K']}\ns_sub_u32 s{sIT}, 64, s{sND}\ns_lshl_b32 s{sIT}, s{sIT}, 13")
    k.srd(SK, 6, f"s{sIT}", f"s{sN}")
    k(f"s_add_u32 s{sN}, s{sT}, {WS['V']}"); k.srd(SV, 6, f"s{sIT}", f"s{sN}")
    k(f"s_lshl_b32 s{sT}, s{sH}, 14\ns_add_u32 s{sN}, s{sT}, {WS['CTX']}\ns_sub_u32 s{sT}, {WSZ['CTX']}, s{sT}"); k.srd(SC, 6, f"s{sT}", f"s{sN}")
    k(f"s_add_u32 s{sND}, s{sND}, 4\ns_mov_b32 s{sTHR}, {fl(THR)}")
    k(f"""v_lshrrev_b32 v{T0+4}, 5, v1
    v_lshlrev_b32 v{T0+3}, 3, v{T0+1}
    v_lshl_add_u32 v{T0+3}, v{T0}, 6, v{T0+3}
    v_and_b32 v{T0+5}, 1, v{T0+2}
    v_lshl_add_u32 v{T0+3}, v{T0+5}, 5, v{T0+3}
    v_lshl_add_u32 v{VW+1}, v{T0+4}, 11, v{T0+3}
    v_add_u32 v{VW}, 32768, v{VW+1}
    v_and_b32 v{VREL}, 31, v1
    v_lshlrev_b32 v{T0+4}, 2, v{T0+4}
    v_sub_u32 v{VREL}, v{VREL}, v{T0+4}
    v_mov_b32 v{VW+2}, v1""")
    for r in range(128): k(f"v_accvgpr_write_b32 a{r}, 0")
    for r in range(128): k(f"v_mov_b32 v{r}, 0")
    WR = 128
    def wreads(ks):
        return [f"ds_read_b64_tr_b16 {v(WR + (ks&1)*16 + db*4 + hf*2, 2)}, v{VW} offset:{ks*4096 + hf*1024 + db*256}" for db in range(4) for hf in range(2)]
    k.wait_vm(tw0); k("s_barrier")
    for x in wreads(0): k(x)
    NV = len(seq)
    pos = {e: i for i, e in enumerate(seq)}
    k(f"s_mov_b32 s{sIT}, 0\ns_waitcnt vmcnt({NV - 1 - pos[('h',0,1)]}) lgkmcnt(0)")
    Lq, Lhook, Lhb = k.label("qloop"), k.label("qhook"), k.label("qback")
    k(f".p2align 3\n{Lq}:")
    for ks in range(8):
        rd = wreads((ks+1) & 7)
        for g in range(8):
            u, db = g >> 2, g & 3
            k(mfma32(u*64 + db*16, WR + (ks&1)*16 + db*4, FR + (ks*2+u)*4))
            if ks == 7 and g == 0: k("s_barrier")
            if g == 7:
                issued = pos[("h", ks, 1)]
                n = (NV - 1 - pos[("h", ks+1, 1)]) + issued if ks < 7 else issued - 1 - pos[("h", 0, 1)]
                k(f"s_waitcnt vmcnt({n}) lgkmcnt(0)")
            if g < 4:
                for x in rd[2*g:2*g+2]: k(x)
            if g == 4:
                if ks < 4:
                    for x in wdma(2*ks)[0]: k(x)
                k(hload(ks, 0))
            if g in (5, 6) and ks < 4: k(wdma(2*ks + g - 5)[1])
            if g == 7: k(hload(ks, 1))
            if ks == 6 and g == 5:
                k(f"v_add_u32 v{VW}, s{sW1}, v{VW+1}")
            if ks == 5 and g == 5:
                k(f"s_add_u32 s{sDO}, s{sDO}, {(128-16)*8192}\ns_add_u32 s{sDM}, s{sX}, s{sW0}\ns_add_u32 s{sIT}, s{sIT}, 1")
            if ks == 5 and g == 6:
                k(f"s_add_u32 s{sHO}, s{sHO}, 8192\ns_cmp_ge_u32 s{sIT}, 3\ns_cbranch_scc1 {Lhook}\n{Lhb}:")
            if ks == 7 and g == 5:
                k(f"s_mov_b32 s{sT}, s{sW0}\ns_mov_b32 s{sW0}, s{sW1}\ns_mov_b32 s{sW1}, s{sW2}\ns_mov_b32 s{sW2}, s{sT}")
    k(f"s_add_u32 s{sHO2}, s{sHO2}, 8192\ns_cmp_lt_u32 s{sIT}, 5\ns_cbranch_scc1 {Lq}")
    def qhook():
        k(f"{Lhook}:\ns_cmp_eq_u32 s{sIT}, 3")
        k(f"s_cselect_b32 s{SD}, s{SK}, s{SV}\ns_cselect_b32 s{SD+1}, s{SK+1}, s{SV+1}\ns_mov_b32 s{SD+2}, s{SK+2}\ns_cselect_b32 s{sDM}, 0, 65536")
        k(f"s_add_u32 s{sDM}, s{sDM}, s{sX}\ns_mov_b32 s{sDO}, s{sX}\ns_movk_i32 s{sDS}, 4096")
        for j in range(4): k(f"v_mov_b32 v{VD+j}, v{LN16}")
        k(f"s_branch {Lhb}")
    later.append(qhook)
    k(f"s_waitcnt vmcnt(0)\ns_barrier")
    k(f"s_add_u32 s{sT}, s{sX}, 32768\ns_mov_b32 m0, s{sT}\nv_mov_b32 v{VK}, v{LN16}")
    for i in range(4): k(f"buffer_load_dwordx4 v{LN16}, {s(SK,4)}, s{sT} offen offset:{1024*i} lds")
    k(f"s_add_u32 s{sT}, s{sT}, 4096\ns_mov_b32 m0, s{sT}\nv_add_u32 v{VK+1}, 8192, v{LN16}")
    for i in range(4): k(f"buffer_load_dwordx4 v{LN16}, {s(SK,4)}, s{sT} offen offset:{1024*i} lds")
    k(f"s_lshl_b32 s{sT}, s3, 12\ns_add_u32 s{sT}, s{sT}, 32768\ns_add_u32 m0, s{sT}, 65536\nv_add_u32 v{VV}, 0x10000, v{LN16}")
    for i in range(4): k(f"buffer_load_dwordx4 v{LN16}, {s(SV,4)}, s{sT} offen offset:{1024*i} lds")
    k(f"s_lshl_b32 s{sX}, s3, 11\ns_add_u32 s{sVW}, s{sX}, {6*8192}\ns_add_u32 s{sKW}, s{sX}, {8*8192}")
    for g in range(0, 16, 2): k(kread(g, 'D', VK))
    for u in range(2):
        for db in range(4):
            for e in range(8):
                b = u*64 + db*16
                k(f"v_cvt_pk_bf16_f32 v{Q_ + u*32 + db*8 + e}, v{b+2*e}, v{b+2*e+1}")
    for r in range(32): k(f"v_mov_b32 v{CB+r}, 0")
    k(f"v_mov_b32 v{L0}, 0\nv_mov_b32 v{L1}, 0")
    Ls = k.label("nomask0")
    k(f"s_cmp_lg_u32 s{sDA}, 0\ns_cbranch_scc1 {Ls}")
    mask_unit(k, 0, sDA)
    k(f"s_nop 1\n{Ls}:\ns_waitcnt lgkmcnt(0)")
    for g in range(16): k(qk_mfma(g, 'D', 0))
    k(f"s_barrier\ns_and_b32 m0, s{sKW}, 0xffff")
    for g in range(0, D, 2): k(kread(g, 'D', VK+1))
    for i in range(2): k(f"buffer_load_dwordx4 v{LN16}, {s(SK,4)}, s{sKW} offen offset:{1024*i} lds")
    k(f"s_add_u32 s{sKW}, s{sKW}, 8192\ns_nop 7")
    for u in range(2):
        row_max(k, T0+1, Sreg(0, u))
        for r in range(16): k(f"v_sub_f32 v{Sreg(0,u)+r}, v{Sreg(0,u)+r}, v{T0+1}\nv_sub_f32 v{CB+u*16+r}, v{CB+u*16+r}, v{T0+1}")
    for c, x in sm_ops(0)[0][:NFIRST]: k(x)
    k(f"s_mov_b32 s{sN}, 1\ns_waitcnt lgkmcnt(0)")
    def hook(mode):
        lab, back = k.label("mk"), k.label("mkb")
        if mode == 'D': k(f"s_cmp_ge_u32 s{sN}, s{sDA}\ns_cbranch_scc1 {lab}\n{back}:")
        else: k(f"s_cmp_ge_u32 s{sN}, s{sIT}\ns_cbranch_scc1 {lab}\n{back}:")
        def f():
            k(f"{lab}:\ns_sub_u32 s{sT}, s{sDA if mode == 'D' else sDB}, s{sN}\ns_lshl_b32 s{sT}, s{sT}, 5")
            mask_unit(k, 0, sT)
            if mode == 'S':
                k(f"s_sub_u32 s{sT}, s{sT}, 32"); mask_unit(k, 1, sT)
            k(f"s_nop 1\ns_branch {back}")
        later.append(f)
    Ld, Lt, Lsl, Lf = k.label("dual"), k.label("trans"), k.label("single"), k.label("final")
    k(f"s_sub_u32 s{sIT}, s{sDB}, 1")
    k(f".p2align 3\n{Ld}:")
    hook('D')
    body(k, 'D', 'D', 0, [f"s_add_u32 s{sN}, s{sN}, 1", f"s_cmp_eq_u32 s{sN}, s{sND}"], later)
    k(f"s_cbranch_scc1 {Lt}")
    hook('D')
    body(k, 'D', 'D', 1, [f"s_add_u32 s{sN}, s{sN}, 1"], later)
    k(f"s_branch {Ld}")
    k(f".p2align 3\n{Lt}:")
    for g in range(1, D, 2): k(kread(g, 'S', VK))
    for r in range(16): k(f"v_mov_b32 v{CB+r}, v{CB+16+r}")
    k(f"s_add_u32 s{sKW}, s{sKW}, s{sX}\ns_sub_u32 s{sND}, 68, s{sND}\ns_waitcnt lgkmcnt(0)")
    hook('S')
    body(k, 'S', 'D', 1, [f"s_add_u32 s{sN}, s{sN}, 2", f"s_add_u32 s{sVW}, s{sVW}, s{sX}"], later)
    k(f".p2align 3\n{Lsl}:")
    hook('S')
    body(k, 'S', 'S', 0, [f"s_add_u32 s{sN}, s{sN}, 2", f"s_cmp_eq_u32 s{sN}, s{sND}"], later)
    k(f"s_cbranch_scc1 {Lf}")
    hook('S')
    body(k, 'S', 'S', 1, [f"s_add_u32 s{sN}, s{sN}, 2"], later)
    k(f"s_branch {Lsl}")
    k(f"{Lf}:\ns_waitcnt lgkmcnt(0)")
    for g in range(8): k(vread(g, 'S'))
    ops, late = sm_ops(1)
    for c, x in ops[NFIRST:]: k(x)
    lab, back = k.label("fb"), k.label("back")
    later.append(lambda: fallback(k, lab, back, None, 'S', 1))
    k(f"s_cbranch_vccnz {lab}\n{back}:\ns_waitcnt lgkmcnt(0)")
    for g in range(8, 16): k(vread(g, 'S'))
    for c, x in late: k(x)
    k(f"v_add_f32 v{L1}, v{L1}, v{TS0}\nv_add_f32 v{L1}, v{L1}, v{TS1}")
    for g in range(8): k(pv_mfma(g, 'S', 1))
    k("s_waitcnt lgkmcnt(0)")
    for g in range(8, 16): k(pv_mfma(g, 'S', 1))
    ln = VW + 2
    k(f"""v_bfe_u32 v{T0}, v{ln}, 2, 1
    v_bfe_u32 v{T0+1}, v{ln}, 3, 2
    v_and_b32 v{T0+2}, 3, v{ln}
    v_lshrrev_b32 v{T0+3}, 5, v{ln}
    v_lshlrev_b32 v{T0}, 10, v{T0}
    v_lshl_add_u32 v{T0}, v{T0+1}, 6, v{T0}
    v_lshl_add_u32 v{T0}, v{T0+2}, 4, v{T0}
    v_lshl_add_u32 v{T0}, v{T0+3}, 8, v{T0}""")
    for u, sd in enumerate((sDA, sDB)):
        k(f"v_mov_b32 v{T0+1}, v{L0+u}\ns_lshr_b32 s{sT}, s{sd}, 1\ns_lshl_b32 s{sT}, s{sT}, 19\nv_permlane32_swap_b32 v{L0+u}, v{T0+1}")
        k(f"s_and_b32 s{sN}, s{sd}, 1\ns_lshl_b32 s{sN}, s{sN}, 11\nv_add_f32 v{T0+2}, v{L0+u}, v{T0+1}\nv_rcp_f32 v{T0+2}, v{T0+2}\ns_add_u32 s{sT}, s{sT}, s{sN}")
        for db in range(4):
            for rh in range(2):
                b = u*64 + db*16 + rh*8
                for e in range(8): k(f"v_accvgpr_read_b32 v{b+e}, a{b+e}")
                for e in range(8): k(f"v_mul_f32 v{b+e}, v{b+e}, v{T0+2}")
                for e in range(4): k(f"v_cvt_pk_bf16_f32 v{b+e}, v{b+2*e}, v{b+2*e+1}")
                k(f"buffer_store_dwordx4 {v(b,4)}, v{T0}, {s(SC,4)}, s{sT} offen offset:{rh*512}")
            k(f"s_add_u32 s{sT}, s{sT}, 4096")
    k(f"{end}:\ns_endpgm")
    while later: later.pop(0)()
    return k
```

```python
NAME = "adaLN_cond__compressed_kv_cla__mixer_gmlp__prompt"

KA = dict(x=0, ckv=8, wq=16, wuk=24, wuv=32, wo=40, bx=48, win=56, wsp=64, bsp=72, wout=80, c=88, wmod=96,
          out=104, dbg=112, ws=120)
SZ = dict(x=2048*640*2, ckv=2048*512*2, wq=640*4096*2, wuk=512*4096*2, wuv=512*4096*2, wo=4096*640*2,
          win=640*1728*2, wsp=2048*2048*2, bsp=4096, wout=864*640*2, c=1280, wmod=640*3840*2, out=2048*640*2, dbg=256)
WS = dict(MOD=0, UV=0x4000, FLG=0x8000, ST1=0x10000, ST2=0x30000, H=0x100000, X1S=0x400000, X1=0x700000, Z1=0xA00000,
          Z2=0xE00000, U=0x1200000, WO=0x1600000, WIN=0x1B00000, WOUT=0x1E00000, WSP=0x2000000,
          CTX=0x2800000, K=0x4000000, V=0x5000000)
WSZ = dict(MOD=15360, UV=14336, FLG=0x8000, ST1=0x20000, ST2=0x20000, H=2048*640*2, X1S=2048*640*2, X1=2048*640*2, Z1=2048*896*2,
           Z2=2048*896*2, U=2048*896*2, WO=4096*640*2, WIN=640*1792*2, WOUT=896*640*2, WSP=2048*2048*2,
           CTX=2048*4096*2, K=2048*4096*2, V=2048*4096*2)

def v(i, n=1): return f"v{i}" if n == 1 else f"v[{i}:{i+n-1}]"
def a(i, n=1): return f"a{i}" if n == 1 else f"a[{i}:{i+n-1}]"
def s(i, n=1): return f"s{i}" if n == 1 else f"s[{i}:{i+n-1}]"
def R(r, n=1):
    return v(r, n) if r < 256 else a(r - 256, n)

import struct
def f2u(x): return struct.unpack("<I", struct.pack("<f", x))[0]
def fl(x): return "0x%08x" % f2u(x)

class Kern:
    def __init__(self, name, grid, block=256, lds=0, vgpr=256, agpr=0, sgpr=96):
        self.name, self.grid, self.block, self.lds = name, grid, block, lds
        self.vgpr, self.agpr, self.sgpr = vgpr, agpr, sgpr
        self.L = []
        self.vm = 0
        self.lg = 0
        self.uid = 0
    def __call__(self, txt):
        for ln in txt.split("\n"):
            ln = ln.strip()
            if not ln: continue
            op = ln.split()[0]
            if op.startswith(("buffer_load", "buffer_store", "buffer_atomic", "global_")): self.vm += 1
            if op.startswith("ds_"): self.lg += 1
            self.L.append(ln if ln.endswith(":") or ln.startswith(".") else "  " + ln)
    def label(self, base):
        self.uid += 1
        return f"L_{self.name}_{base}_{self.uid}"
    def wait_vm(self, ticket):
        n = self.vm - ticket
        assert 0 <= n, (n, ticket)
        self(f"s_waitcnt vmcnt({min(n, 63)})")
    def wait_lg(self, ticket):
        n = self.lg - ticket
        assert 0 <= n
        self(f"s_waitcnt lgkmcnt({min(n, 15)})")
    def srd(self, d, base, size, off=None):
        if off is None:
            self(f"s_mov_b32 s{d}, s{base}\ns_mov_b32 s{d+1}, s{base+1}")
        else:
            self(f"s_add_u32 s{d}, s{base}, {off}\ns_addc_u32 s{d+1}, s{base+1}, 0")
        self(f"s_mov_b32 s{d+2}, {size}\ns_mov_b32 s{d+3}, 0x20000")
    def text(self):
        kn = self.name + "_kernel"
        acc = (self.vgpr + 3) // 4 * 4
        nfv = acc + self.agpr if self.agpr else self.vgpr
        out = [".text", f".globl {kn}", ".p2align 8", f".type {kn},@function", f"{kn}:"]
        out += self.L
        out += ['.section .rodata,"a"', ".p2align 6", f".amdhsa_kernel {kn}",
                f"  .amdhsa_next_free_vgpr {nfv}", f"  .amdhsa_next_free_sgpr {self.sgpr}", f"  .amdhsa_accum_offset {acc}",
                "  .amdhsa_group_segment_fixed_size 0", "  .amdhsa_kernarg_size 128", "  .amdhsa_user_sgpr_count 2",
                "  .amdhsa_user_sgpr_kernarg_segment_ptr 1", "  .amdhsa_system_sgpr_workgroup_id_x 1",
                ".end_amdhsa_kernel"]
        return "\n".join(out)
    def launch_line(self):
        return f"; @launch kernel={self.name}_kernel grid=({self.grid},1,1) block=({self.block},1,1) lds={self.lds}"

def mfma32(d, A, B, c=None):
    return f"v_mfma_f32_32x32x16_bf16 {R(d,16)}, {R(A,4)}, {R(B,4)}, {('0' if c == 'z' else R(d if c is None else c,16))}"
def mfma16(d, A, B, c=None):
    return f"v_mfma_f32_16x16x32_bf16 {R(d,4)}, {R(A,4)}, {R(B,4)}, {('0' if c == 'z' else R(d if c is None else c,4))}"

def rbf(k, dst, src):
    k(f"v_cvt_pk_bf16_f32 {dst}, {src}, {src}\nv_lshlrev_b32 {dst}, 16, {dst}")

HEADER = open("cdna_kernels/" + NAME + ".s.ref").read().split("; Override launch geometry")[0]
def build(kerns):
    out = [HEADER.rstrip()]
    out += [k.launch_line() for k in kerns]
    out += ['.amdgcn_target "amdgcn-amd-amdhsa--gfx950"']
    seen = set()
    for k in kerns:
        if k.name in seen: continue
        seen.add(k.name)
        out.append(k.text())
    return "\n".join(out) + "\n"
```

```python
from core import *
from small import prologue
KSCALE = 1.4426950408889634 * 128 ** -0.5

def place(k, mf, pre, mem, valu):
    k(mf)
    for grp in (pre, mem, valu):
        for x in grp:
            x() if callable(x) else k(x)

def k_kv():
    k = Kern("kv", 256, lds=163840, vgpr=256, agpr=256)
    end = prologue(k, 256, dict(ckv=4, wuk=6, wuv=8, ws=10))
    k("s_and_b32 s30, s2, 7\ns_lshl_b32 s30, s30, 2\ns_bfe_u32 s31, s2, 0x20003\ns_add_u32 s30, s30, s31\ns_lshr_b32 s31, s2, 5")
    SA, SK, SV, SKO, SVO = 12, 16, 20, 24, 36
    k("s_lshl_b32 s32, s31, 18\ns_lshl_b32 s33, s3, 16\ns_add_u32 s32, s32, s33")
    k.srd(SA, 4, 65536, "s32")
    k(f"s_lshl_b32 s33, s30, 8\ns_sub_u32 s34, {SZ['wuk']}, s33")
    k.srd(SK, 6, "s34", "s33"); k.srd(SV, 8, "s34", "s33")
    k("s_lshl_b32 s33, s30, 19\ns_lshl_b32 s34, s31, 16\ns_add_u32 s33, s33, s34\ns_lshl_b32 s34, s3, 14\ns_add_u32 s33, s33, s34")
    k(f"s_add_u32 s34, s33, {WS['K']}"); k.srd(SKO, 10, 16384, "s34")
    k(f"s_add_u32 s34, s33, {WS['V']}"); k.srd(SVO, 10, 16384, "s34")
    k("s_movk_i32 s40, 4096\ns_movk_i32 s41, 8192\ns_movk_i32 s42, 12288")
    k(f"s_mov_b32 s43, {fl(KSCALE)}")
    so = ["0", "s40", "s41", "s42"]
    k("s_lshl_b32 s44, s3, 13\ns_lshl_b32 s45, s3, 12")
    k("s_lshl_b32 s46, s3, 17\ns_lshl_b32 s47, s3, 18")
    ACCK, ACCV, WR = 0, 128, 192
    LN = 255
    k(f"v_mov_b32 v{LN}, v1")
    VA, VW1, DA, DW1 = 128, 136, 140, 144
    VW2, DW2, VST = 224, 228, 232
    T = 240
    k(f"""v_lshrrev_b32 v{T}, 3, v{LN}
    v_and_b32 v{T+1}, 7, v{LN}
    v_lshrrev_b32 v{T+2}, 4, v{LN}""")
    for j in range(4):
        k(f"""v_add_u32 v{T+3}, {4*(j&1)}, v{T+2}
        v_xor_b32 v{T+3}, v{T+3}, v{T+1}
        v_lshlrev_b32 v{T+3}, 4, v{T+3}
        v_lshl_add_u32 v{T+3}, v{T}, 10, v{T+3}
        v_add_u32 v{DA+j}, {j*7168}, v{T+3}""")
    k(f"""v_bfe_u32 v{T+3}, v{LN}, 2, 2
    v_and_b32 v{T+4}, 3, v{LN}
    v_lshlrev_b32 v{T+5}, 4, v{T+4}
    v_lshl_add_u32 v{T+5}, v{T+3}, 13, v{T+5}
    v_lshl_add_u32 v{T+6}, v{T+2}, 6, v{T+5}""")
    for j in range(4): k(f"v_add_u32 v{DW1+j}, {j*(32768-1024)}, v{T+6}")
    def dma1(j):
        sl = (j % 3) * 49152
        out = []
        for hf in range(2):
            for i in range(4):
                sc = [f"s_add_u32 m0, s44, {sl + hf*4096}", f"s_mov_b32 s48, {hf*32768 + j*128}"] if i == 0 else []
                out.append((sc, f"buffer_load_dwordx4 v{DA+i}, {s(SA,4)}, s48 offen offset:{1024*i} lds"))
        for i in range(4):
            sc = [f"s_add_u32 m0, s45, {sl + 32768}", f"s_add_u32 s48, s46, {j*64*8192}"] if i == 0 else []
            out.append((sc, f"buffer_load_dwordx4 v{DW1+i}, {s(SK,4)}, s48 offen offset:{1024*i} nt lds"))
        return out
    area = [2*49152, 2*49152+16384, 2*49152+32768, 0, 16384, 32768, 49152, 49152+16384]
    def dma2(i):
        out = []
        for j in range(4):
            sc = [f"s_add_u32 m0, s45, {area[i]}", f"s_add_u32 s48, s47, {(i&3)*128*8192 + (i>>2)*128}"] if j == 0 else []
            out.append((sc, f"buffer_load_dwordx4 v{DW2+j}, {s(SV,4)}, s48 offen offset:{1024*j} nt lds"))
        return out
    tk1, tk2 = {}, {}
    for j in range(3):
        for sc, op in dma1(j):
            for x in sc: k(x)
            k(op)
        tk1[j] = k.vm
    k(f"""v_lshrrev_b32 v{T+7}, 5, v{LN}
    v_and_b32 v{T+6}, 1, v{T+2}
    v_lshl_add_u32 v{T+6}, v{T+6}, 6, v{T+5}
    v_lshl_add_u32 v{T+6}, v{T+7}, 15, v{T+6}""")
    for j in range(4): k(f"v_add_u32 v{DW2+j}, {j*(65536-1024)}, v{T+6}")
    k(f"""v_lshlrev_b32 v{T+5}, 3, v{T+4}
    v_lshl_add_u32 v{T+5}, v{T+3}, 6, v{T+5}
    v_and_b32 v{T+6}, 1, v{T+2}
    v_lshl_add_u32 v{T+5}, v{T+6}, 5, v{T+5}
    v_lshl_add_u32 v{VW1}, v{T+7}, 11, v{T+5}
    v_lshl_add_u32 v{VW2}, v{T+7}, 10, v{T+5}""")
    for j in (1, 2): k(f"v_add_u32 v{VW1+j}, {65536*j}, v{VW1}\nv_add_u32 v{VW2+j}, {65536*j}, v{VW2}")
    k(f"""v_and_b32 v{T+5}, 31, v{LN}
    v_bfe_u32 v{T+6}, v{LN}, 1, 3
    v_lshlrev_b32 v{T+5}, 7, v{T+5}
    v_add_u32 v{T+5}, s44, v{T+5}
    v_lshlrev_b32 v{VST}, 4, v{LN}""")
    for ks in range(4):
        k(f"""v_add_u32 v{T+8}, {2*ks}, v{T+7}
        v_xor_b32 v{T+8}, v{T+8}, v{T+6}
        v_lshl_add_u32 v{VA+ks}, v{T+8}, 4, v{T+5}
        v_add_u32 v{VA+4+ks}, 65536, v{VA+ks}""")
    def cfrag(kk, rs): return 256 + (kk*2 + rs)*4
    def reads1(kk):
        j, ks = divmod(kk, 4)
        sl = (j % 3) * 49152
        out = []
        for rs in range(2):
            ad = sl + rs*4096
            out.append(f"ds_read_b128 {R(cfrag(kk, rs),4)}, v{VA + ks + 4*(ad >> 16)} offset:{ad & 65535}")
        for db in range(4):
            for hf in range(2):
                ad = sl + 32768 + ks*4096 + hf*1024 + db*256
                out.append(f"ds_read_b64_tr_b16 {v(WR + (kk&1)*16 + db*4 + hf*2, 2)}, v{VW1 + (ad >> 16)} offset:{ad & 65535}")
        return out
    def reads2(p):
        i, pp = divmod(p, 4)
        out = []
        for u in range(2):
            for db in range(2):
                for hf in range(2):
                    ad = area[i] + (pp*2 + u)*2048 + hf*512 + db*256
                    out.append(f"ds_read_b64_tr_b16 {v(WR + (p&1)*16 + u*8 + db*4 + hf*2, 2)}, v{VW2 + (ad >> 16)} offset:{ad & 65535}")
        return out
    k.wait_vm(tk1[0]); k("s_barrier")
    for x in reads1(0): k(x)
    k("s_waitcnt lgkmcnt(0)")
    dq = []
    def pop_dma():
        sc, op, cb = dq.pop(0)
        def f():
            k(op)
            if cb: cb()
        return sc, f
    def queue(lst, store, key):
        for n, (sc, op) in enumerate(lst):
            dq.append((sc, op, (lambda: store.__setitem__(key, k.vm)) if n == len(lst)-1 else None))
    for kk in range(32):
        j, ks = divmod(kk, 4)
        rd = reads1(kk+1) if kk < 31 else reads2(0)
        for g in range(8):
            db, rs = divmod(g, 2)
            pre, mem = [], []
            if ks == 3 and g == 0:
                assert not dq
                t = tk1[j+1] if j < 7 else tk2[0]
                pre += [lambda t=t: k.wait_vm(t), "s_barrier"]
                if j + 3 < 8: queue(dma1(j+3), tk1, j+3)
                else:
                    for i in range(3*(j-5), min(3*(j-5)+3, 8)): queue(dma2(i), tk2, i)
            if g < 5: mem += rd[2*g:2*g+2]
            if dq and g in ((5, 6, 7) if ks != 3 else (5, 6, 7)) or (dq and g == 4 and ks != 3):
                sc, f = pop_dma(); pre += sc; mem.append(f)
            if g == 7: mem.append("s_waitcnt lgkmcnt(0)")
            place(k, mfma32(ACCK + (rs*4+db)*16, WR + (kk&1)*16 + db*4, cfrag(kk, rs), 'z' if kk == 0 else None), pre, mem, [])
    def epiK():
        out = []
        for rs in range(2):
            for db in range(4):
                for rh in range(2):
                    b = ACCK + (rs*4+db)*16 + rh*8
                    out += [("v", f"v_mul_f32 v{b+e}, s43, v{b+e}") for e in range(8)]
                    out += [("v", f"v_cvt_pk_bf16_f32 v{b+e}, v{b+2*e}, v{b+2*e+1}") for e in range(4)]
                    o = rs*8192 + (db*2+rh)*1024
                    out.append(("m", f"buffer_store_dwordx4 {v(b,4)}, v{VST}, {s(SKO,4)}, {so[o>>12]} offen offset:{o&4095}"))
        return out
    def epiV(ch):
        out = []
        for rs in range(2):
            for d2 in range(2):
                for kh in range(2):
                    b = (ACCV if ch == 0 else ACCK) + (rs*2+d2)*16 + kh*8
                    out += [("v", f"v_cvt_pk_bf16_f32 v{b+e}, v{b+2*e}, v{b+2*e+1}") for e in range(4)]
                    o = rs*8192 + (kh*4 + 2*ch + d2)*1024
                    out.append(("m", f"buffer_store_dwordx4 {v(b,4)}, v{VST}, {s(SVO,4)}, {so[o>>12]} offen offset:{o&4095}"))
        return out
    fill = []
    for p in range(32):
        i, pp = divmod(p, 4)
        ch = i >> 2
        acc = ACCV if ch == 0 else ACCK
        if p == 1: fill = epiK()
        if p == 17:
            assert not fill
            fill = epiV(0)
        rd = reads2(p+1) if p < 31 else []
        for g in range(8):
            u, d2, rs = g >> 2, (g >> 1) & 1, g & 1
            kk = (p & 15)*2 + u
            pre, mem, val = [], [], []
            if pp == 3 and g == 0 and i < 7 and i + 1 in (1, 2, 3, 6):
                need = {1: 1, 2: 2, 3: 5, 6: 7}[i+1]
                pre += [lambda need=need: k.wait_vm(tk2[need]), "s_barrier"]
            if g < 4: mem += rd[2*g:2*g+2]
            if dq and g >= 4:
                sc, f = pop_dma(); pre += sc; mem.append(f)
            if fill and fill[0][0] == "m" and g >= 4: mem.append(fill.pop(0)[1])
            n = 0
            while fill and fill[0][0] == "v" and n < (2 if ch == 0 else 1):
                val.append(fill.pop(0)[1]); n += 1
            if g == 7: pre.append("s_waitcnt lgkmcnt(0)")
            place(k, mfma32(acc + (rs*2+d2)*16, cfrag(kk, rs), WR + (p&1)*16 + u*8 + d2*4, 'z' if kk == 0 else None), pre, mem, val)
        if p == 15: assert len(fill) < 14*7, len(fill)
    assert not fill and not dq
    k("s_nop 15")
    for t, x in epiV(1): k(x)
    k(f"{end}:\ns_endpgm")
    return k
```

```python
from core import *

def prologue(k, nwg, ptrs):
    end = f"L_{k.name}_end"
    k(f"s_cmp_ge_u32 s2, {nwg}\ns_cbranch_scc1 {end}")
    for n, r in ptrs.items():
        k(f"s_load_dwordx2 {s(r,2)}, s[0:1], {KA[n]}")
    k("v_lshrrev_b32 v2, 6, v0\nv_and_b32 v1, 63, v0\nv_readfirstlane_b32 s3, v2")
    k("s_waitcnt lgkmcnt(0)")
    return end

def k_mod():
    k = Kern("mod", 60, lds=1024, vgpr=128)
    end = prologue(k, 60, dict(c=4, wmod=6, ws=8))
    k.srd(12, 4, SZ['c']); k.srd(16, 6, SZ['wmod']); k.srd(20, 8, WSZ['MOD'], WS['MOD'])
    k("v_lshrrev_b32 v2, 3, v1\nv_and_b32 v3, 7, v1")
    k("v_mul_u32_u24 v2, 20, v2\ns_mul_i32 s24, s3, 160\nv_add_u32 v2, s24, v2")
    k("v_lshlrev_b32 v4, 1, v2")
    k("v_mul_u32_u24 v5, 7680, v2\nv_lshl_add_u32 v5, v3, 4, v5")
    k("s_lshl_b32 s25, s2, 7")
    for i in range(5):
        k(f"buffer_load_dwordx2 {v(8+2*i,2)}, v4, s[12:15], 0 offen offset:{8*i}")
    tc = k.vm
    tw = []
    for i in range(20):
        k(f"buffer_load_dwordx4 {v(48+4*i,4)}, v5, s[16:19], s25 offen nt")
        tw.append(k.vm)
        k("s_add_u32 s25, s25, 7680")
    k.wait_vm(tc)
    for i in range(20):
        src = 8 + i // 2
        k(f"v_lshlrev_b32 v{20+i}, 16, v{src}" if i % 2 == 0 else f"v_and_b32 v{20+i}, 0xffff0000, v{src}")
    for i in range(20):
        k(f"v_mul_f32 v6, {fl(-1.4426950408889634)}, v{20+i}\nv_exp_f32 v6, v6\ns_nop 0\nv_add_f32 v6, 1.0, v6\nv_rcp_f32 v6, v6\ns_nop 0\nv_mul_f32 v{20+i}, v{20+i}, v6")
        rbf(k, f"v{20+i}", f"v{20+i}")
    for j in range(8): k(f"v_mov_b32 v{40+j}, 0")
    for i in range(20):
        k.wait_vm(tw[i])
        for j in range(4):
            k(f"v_lshlrev_b32 v6, 16, v{48+4*i+j}\nv_and_b32 v7, 0xffff0000, v{48+4*i+j}")
            k(f"v_fmac_f32 v{40+2*j}, v6, v{20+i}\nv_fmac_f32 v{41+2*j}, v7, v{20+i}")
    k("s_nop 1")
    for j in range(4): k(f"v_permlane32_swap_b32 v{40+j}, v{44+j}")
    k("s_nop 1")
    for j in range(4): k(f"v_add_f32 v{40+j}, v{40+j}, v{44+j}")
    k("s_nop 1")
    for j in range(2): k(f"v_permlane16_swap_b32 v{40+j}, v{42+j}")
    k("s_nop 1")
    for j in range(2): k(f"v_add_f32 v{40+j}, v{40+j}, v{42+j}")
    k("s_nop 1")
    for j in range(2): k(f"v_add_f32_dpp v{40+j}, v{40+j}, v{40+j} row_ror:8 row_mask:0xf bank_mask:0xf")
    k("v_lshrrev_b32 v6, 4, v1\nv_lshlrev_b32 v6, 3, v6\nv_lshl_add_u32 v6, v3, 5, v6\ns_lshl_b32 s24, s3, 8\nv_add_u32 v6, s24, v6")
    k("ds_write_b64 v6, v[40:41]\ns_waitcnt lgkmcnt(0)\ns_barrier")
    k(f"s_cmp_lg_u32 s3, 0\ns_cbranch_scc1 {end}")
    k("v_lshlrev_b32 v6, 2, v1")
    for w in range(4): k(f"ds_read_b32 v{8+w}, v6 offset:{256*w}")
    k("s_waitcnt lgkmcnt(0)\nv_add_f32 v8, v8, v9\nv_add_f32 v10, v10, v11\nv_add_f32 v8, v8, v10")
    rbf(k, "v8", "v8")
    k("s_sub_u32 s24, s2, 10\ns_cmp_lt_u32 s24, 10\ns_cselect_b32 s25, 1.0, 0\ns_sub_u32 s24, s2, 40\ns_cmp_lt_u32 s24, 10\ns_cselect_b32 s25, 1.0, s25")
    k("v_add_f32 v8, s25, v8")
    rbf(k, "v8", "v8")
    k("s_lshl_b32 s24, s2, 8\nbuffer_store_dword v8, v6, s[20:23], s24 offen")
    k(f"{end}:\ns_endpgm")
    return k

def row16_sum(k, regs):
    for perm in ("quad_perm:[1,0,3,2]", "quad_perm:[2,3,0,1]", "row_half_mirror", "row_mirror"):
        if len(regs) < 3: k("s_nop 1")
        for r in regs: k(f"v_add_f32_dpp v{r}, v{r}, v{r} {perm} row_mask:0xf bank_mask:0xf")

def k_h():
    k = Kern("hln", 128, vgpr=192)
    end = prologue(k, 128, dict(x=4, ws=8))
    k.srd(12, 4, SZ['x']); k.srd(16, 8, WSZ['MOD'], WS['MOD']); k.srd(20, 8, WSZ['H'], WS['H'])
    k("v_lshrrev_b32 v2, 4, v0\ns_lshl_b32 s24, s2, 4\nv_add_u32 v2, s24, v2\nv_and_b32 v3, 15, v1")
    k("v_mul_u32_u24 v4, 1280, v2\nv_lshl_add_u32 v4, v3, 4, v4\nv_lshlrev_b32 v5, 5, v3")
    for i in range(5): k(f"buffer_load_dwordx4 {v(8+4*i,4)}, v4, s[12:15], 0 offen offset:{256*i}")
    tx = k.vm
    k("s_movk_i32 s25, 2560")
    for i in range(5):
        for hf in range(2):
            k(f"buffer_load_dwordx4 {v(72+8*i+4*hf,4)}, v5, s[16:19], 0 offen offset:{512*i+16*hf}")
            k(f"buffer_load_dwordx4 {v(112+8*i+4*hf,4)}, v5, s[16:19], s25 offen offset:{512*i+16*hf}")
    k.wait_vm(tx)
    X = 32
    for e in range(40):
        k(f"v_lshlrev_b32 v{X+e}, 16, v{8+e//2}" if e % 2 == 0 else f"v_and_b32 v{X+e}, 0xffff0000, v{8+e//2}")
    k(f"v_add_f32 v6, v{X}, v{X+1}")
    for e in range(2, 40): k(f"v_add_f32 v6, v6, v{X+e}")
    row16_sum(k, [6])
    k(f"v_mul_f32 v6, {fl(1/640)}, v6")
    k(f"v_sub_f32 v8, v{X}, v6\nv_mul_f32 v7, v8, v8")
    for e in range(1, 40): k(f"v_sub_f32 v8, v{X+e}, v6\nv_fmac_f32 v7, v8, v8")
    row16_sum(k, [7])
    k(f"v_mul_f32 v7, {fl(1/640)}, v7")
    rbf(k, "v7", "v7"); rbf(k, "v6", "v6")
    k(f"v_add_f32 v7, {fl(1e-5)}, v7"); rbf(k, "v7", "v7")
    k("v_sqrt_f32 v7, v7\ns_nop 0"); rbf(k, "v7", "v7")
    k("v_rcp_f32 v7, v7\ns_waitcnt vmcnt(0)")
    for e in range(0, 40, 2):
        x0, x1 = X+e, X+e+1
        def rnd2():
            k(f"v_cvt_pk_bf16_f32 v8, v{x0}, v{x1}\nv_lshlrev_b32 v{x0}, 16, v8\nv_and_b32 v{x1}, 0xffff0000, v8")
        k(f"v_sub_f32 v{x0}, v{x0}, v6\nv_sub_f32 v{x1}, v{x1}, v6"); rnd2()
        k(f"v_mul_f32 v{x0}, v{x0}, v7\nv_mul_f32 v{x1}, v{x1}, v7"); rnd2()
        k(f"v_mul_f32 v{x0}, v{x0}, v{112+e}\nv_mul_f32 v{x1}, v{x1}, v{113+e}"); rnd2()
        k(f"v_add_f32 v{x0}, v{x0}, v{72+e}\nv_add_f32 v{x1}, v{x1}, v{73+e}")
        k(f"v_cvt_pk_bf16_f32 v{160+e//2}, v{x0}, v{x1}")
    k("v_lshrrev_b32 v4, 5, v2\nv_mul_u32_u24 v4, 40960, v4\nv_and_b32 v5, 31, v2\nv_lshl_add_u32 v4, v5, 4, v4\nv_lshl_add_u32 v4, v3, 9, v4")
    for i in range(5):
        k(f"s_mov_b32 s25, {8192*i}\nbuffer_store_dwordx4 {v(160+4*i,4)}, v4, s[20:23], s25 offen")
    k(f"{end}:\ns_endpgm")
    return k

def divc(k, d, src, c, tmp):
    m = (1 << 32) // c + 1
    k(f"s_mov_b32 s{tmp}, {m}\ns_mul_hi_u32 s{d}, s{src}, s{tmp}")

def k_pre():
    NO, NI, NU, NS = 1280, 540, 280, 2048
    NZ = 20
    tot = NO + NI + NU + NS + NZ
    nwg = (tot + 3) // 4
    k = Kern("pre", nwg, lds=16384, vgpr=64)
    end = prologue(k, nwg, dict(wo=4, win=6, wout=8, wsp=10, ws=12))
    k("s_lshl_b32 s14, s2, 2\ns_add_u32 s14, s14, s3")
    k("s_lshl_b32 s15, s3, 12")
    k("v_lshlrev_b32 v10, 4, v1")
    k("v_lshrrev_b32 v2, 3, v1\nv_and_b32 v3, 7, v1\nv_lshlrev_b32 v3, 4, v3")
    k("v_lshrrev_b32 v5, 4, v1\nv_bfe_u32 v6, v1, 2, 2\nv_and_b32 v7, 3, v1\nv_lshlrev_b32 v7, 3, v7\nv_lshl_add_u32 v7, v6, 7, v7\nv_add_u32 v7, s15, v7")
    Lin, Lout, Lsp, Lz, Ltr = [k.label(x) for x in ("in", "out", "sp", "z", "tr")]
    k(f"s_cmp_ge_u32 s14, {NO}\ns_cbranch_scc1 {Lin}")
    divc(k, 30, 14, 10, 40); k("s_mul_i32 s31, s30, 10\ns_sub_u32 s31, s14, s31")
    k.srd(16, 4, SZ['wo']); k.srd(20, 12, WSZ['WO'], WS['WO'])
    k("s_movk_i32 s32, 1280\ns_lshl_b32 s33, s30, 5\ns_add_u32 s34, s33, 16")
    k("v_lshrrev_b32 v8, 1, v5\nv_lshlrev_b32 v8, 11, v8\nv_and_b32 v9, 1, v5\nv_lshl_add_u32 v8, v9, 9, v8\nv_add_u32 v7, v7, v8\nv_add_u32 v8, 1024, v7")
    for b in range(4):
        k(f"s_lshl_b32 s41, s31, 2\ns_add_u32 s41, s41, {b}"); divc(k, 42, 41, 5, 40)
        k(f"s_mul_i32 s43, s42, 5\ns_sub_u32 s43, s41, s43\ns_lshl_b32 s42, s42, 7\ns_add_u32 s42, s42, s30\ns_mul_i32 s42, s42, 5\ns_add_u32 s42, s42, s43\ns_lshl_b32 s{36+b}, s42, 10")
    k(f"s_branch {Ltr}")
    def two_blocks(nb):
        hf = nb // 2
        divc(k, 41, 30, nb, 40); k(f"s_mul_i32 s42, s41, {nb}\ns_sub_u32 s42, s30, s42\ns_mul_i32 s41, s41, {32*nb}")
        k(f"s_lshl_b32 s33, s42, 5\ns_add_u32 s43, s33, 16\ns_cmp_ge_u32 s42, {hf}\ns_cselect_b32 s33, s43, s33\ns_add_u32 s34, s33, 16")
        k(f"s_cmp_eq_u32 s42, {nb-1}\ns_cselect_b32 s33, {16*(nb-1)}, s33\ns_cselect_b32 s34, {16*(2*nb-1)}, s34")
        k("s_add_u32 s33, s33, s41\ns_add_u32 s34, s34, s41")
        k("v_lshl_add_u32 v7, v5, 9, v7\nv_add_u32 v8, 2048, v7")
    k(f"{Lin}:\ns_sub_u32 s14, s14, {NO}\ns_cmp_ge_u32 s14, {NI}\ns_cbranch_scc1 {Lout}")
    divc(k, 30, 14, 27, 40); k("s_mul_i32 s31, s30, 27\ns_sub_u32 s31, s14, s31")
    k.srd(16, 6, SZ['win']); k.srd(20, 12, WSZ['WIN'], WS['WIN'])
    k("s_movk_i32 s32, 3456"); two_blocks(5)
    for b in range(4):
        k(f"s_lshl_b32 s41, s31, 2\ns_add_u32 s41, s41, {b}\ns_add_u32 s42, s41, 2\ns_cmp_ge_u32 s41, 54\ns_cselect_b32 s41, s42, s41")
        divc(k, 42, 41, 7, 40)
        k(f"s_mul_i32 s43, s42, 7\ns_sub_u32 s43, s41, s43\ns_mul_i32 s42, s42, 20\ns_add_u32 s42, s42, s30\ns_mul_i32 s42, s42, 7\ns_add_u32 s42, s42, s43\ns_lshl_b32 s{36+b}, s42, 10")
    k(f"s_branch {Ltr}")
    k(f"{Lout}:\ns_sub_u32 s14, s14, {NI}\ns_cmp_ge_u32 s14, {NU}\ns_cbranch_scc1 {Lsp}")
    divc(k, 30, 14, 10, 40); k("s_mul_i32 s31, s30, 10\ns_sub_u32 s31, s14, s31")
    k.srd(16, 8, SZ['wout']); k.srd(20, 12, WSZ['WOUT'], WS['WOUT'])
    k("s_movk_i32 s32, 1280"); two_blocks(7)
    for b in range(4):
        k(f"s_lshl_b32 s41, s31, 2\ns_add_u32 s41, s41, {b}"); divc(k, 42, 41, 5, 40)
        k(f"s_mul_i32 s43, s42, 5\ns_sub_u32 s43, s41, s43\ns_mul_i32 s42, s42, 28\ns_add_u32 s42, s42, s30\ns_mul_i32 s42, s42, 5\ns_add_u32 s42, s42, s43\ns_lshl_b32 s{36+b}, s42, 10")
    k(f"{Ltr}:")
    k("v_mul_lo_u32 v4, v2, s32\nv_add_u32 v4, v4, v3\ns_lshl_b32 s31, s31, 7")
    for j in range(4):
        k(f"s_add_u32 s41, s{33 + j//2}, {8*(j%2)}\ns_mul_i32 s41, s41, s32\ns_add_u32 s41, s41, s31\ns_add_u32 m0, s15, {1024*j}\ns_nop 0")
        k("buffer_load_dwordx4 v4, s[16:19], s41 offen nt lds")
    k("s_waitcnt vmcnt(0)")
    for b in range(4):
        k(f"ds_read_b64_tr_b16 {v(16+4*b,2)}, v7 offset:{32*b}\nds_read_b64_tr_b16 {v(18+4*b,2)}, v8 offset:{32*b}")
    k("s_waitcnt lgkmcnt(0)")
    for b in range(4): k(f"buffer_store_dwordx4 {v(16+4*b,4)}, v10, s[20:23], s{36+b} offen")
    k("s_endpgm")
    k(f"{Lsp}:\ns_sub_u32 s14, s14, {NU}\ns_cmp_ge_u32 s14, {NS}\ns_cbranch_scc1 {Lz}")
    k.srd(16, 10, SZ['wsp']); k.srd(20, 12, WSZ['WSP'], WS['WSP'])
    k("s_lshr_b32 s30, s14, 4\ns_and_b32 s31, s14, 15")
    k("s_lshr_b32 s33, s30, 1\ns_lshl_b32 s33, s33, 5\ns_and_b32 s34, s30, 1\ns_lshl_b32 s34, s34, 2\ns_add_u32 s33, s33, s34\ns_lshl_b32 s33, s33, 12\ns_lshl_b32 s34, s31, 8\ns_add_u32 s33, s33, s34")
    k("v_and_b32 v4, 15, v1\nv_lshlrev_b32 v4, 4, v4\nv_lshl_add_u32 v4, v5, 12, v4")
    for j in range(4):
        k(f"s_add_u32 s41, s33, {8*4096*j}\ns_add_u32 m0, s15, {1024*j}\ns_nop 0\nbuffer_load_dwordx4 v4, s[16:19], s41 offen nt lds")
    k("v_and_b32 v7, 15, v1\nv_lshlrev_b32 v7, 8, v7\nv_lshl_add_u32 v7, v5, 4, v7\nv_add_u32 v7, s15, v7")
    k("s_lshr_b32 s33, s30, 2\ns_lshl_b32 s33, s33, 18\ns_lshl_b32 s34, s31, 14\ns_add_u32 s33, s33, s34\ns_and_b32 s34, s30, 3\ns_lshl_b32 s34, s34, 10\ns_add_u32 s33, s33, s34")
    k("s_waitcnt vmcnt(0)")
    for b in range(4): k(f"ds_read_b128 {v(16+4*b,4)}, v7 offset:{64*b}")
    k("s_waitcnt lgkmcnt(0)")
    for b in range(4): k(f"buffer_store_dwordx4 {v(16+4*b,4)}, v10, s[20:23], s33 offen\ns_add_u32 s33, s33, 4096")
    k("s_endpgm")
    k(f"{Lz}:\ns_sub_u32 s14, s14, {NS}\ns_cmp_ge_u32 s14, {NZ}\ns_cbranch_scc1 {end}")
    k.srd(20, 12, WSZ['WIN'], WS['WIN'])
    for j in range(4): k(f"v_mov_b32 v{16+j}, 0")
    for hf in range(2):
        k(f"s_add_u32 s33, s14, {(hf*8+7)*20}\ns_mul_i32 s33, s33, 7168\ns_add_u32 s33, s33, 5120")
        k("buffer_store_dwordx4 v[16:19], v10, s[20:23], s33 offen\nbuffer_store_dwordx4 v[16:19], v10, s[20:23], s33 offen offset:1024")
    k(f"{end}:\ns_endpgm")
    return k

def k_uv():
    k = Kern("uv", 28, vgpr=128)
    end = prologue(k, 28, dict(ws=4))
    k.srd(8, 4, WSZ['MOD'], WS['MOD']); k.srd(12, 4, WSZ['WIN'], WS['WIN']); k.srd(16, 4, WSZ['UV'], WS['UV'])
    k("s_lshl_b32 s20, s2, 2\ns_add_u32 s20, s20, s3")
    divc(k, 21, 20, 7, 40); k("s_mul_i32 s22, s21, 7\ns_sub_u32 s22, s20, s22\ns_mul_i32 s21, s21, 140\ns_add_u32 s21, s21, s22\ns_lshl_b32 s21, s21, 10")
    k("v_lshlrev_b32 v2, 4, v1")
    for st in range(20): k(f"buffer_load_dwordx4 {v(40+4*st,4)}, v2, s[12:15], s21 offen\ns_add_u32 s21, s21, 7168")
    k("v_and_b32 v3, 1, v1\nv_mul_u32_u24 v3, 2560, v3\nv_sub_u32 v3, 10240, v3\nv_lshrrev_b32 v4, 4, v1\nv_lshl_add_u32 v3, v4, 4, v3")
    for st in range(20):
        w, s5 = divmod(st, 5)
        b1 = 160*w + (32*s5 if s5 < 2 else 32*s5 + 16 if s5 < 4 else 64)
        b2 = b1 + 16 if s5 < 4 else 160*w + 144
        k(f"buffer_load_dwordx4 v[8:11], v3, s[8:11], 0 offen offset:{4*b1}\nbuffer_load_dwordx4 v[12:15], v3, s[8:11], 0 offen offset:{4*b2}\ns_waitcnt vmcnt(0)")
        for j in range(4): k(f"v_cvt_pk_bf16_f32 v{16+j}, v{8+2*j}, v{9+2*j}")
        k("s_nop 1")
        k(mfma16(24, 16, 40+4*st, 'z' if st == 0 else None))
    k("s_nop 15\nv_and_b32 v3, 15, v1\nv_lshlrev_b32 v3, 2, v3\ns_lshl_b32 s21, s20, 6\ns_add_u32 s22, s21, 7168")
    k("buffer_store_dword v24, v3, s[16:19], s21 offen\nbuffer_store_dword v25, v3, s[16:19], s22 offen")
    k(f"{end}:\ns_endpgm")
    return k
```

```python
from core import *
from small import prologue, row16_sum
sTG, sTL, sX, sY, sA, sB, sI = 40, 41, 42, 43, 44, 45, 46
LN16, LN16B, VT, LN8, VT8, VRW, VRR, LN, T0 = 224, 225, 226, 230, 231, 235, 238, 239, 240

def head(k, ptrs, tbstride, nb):
    end = prologue(k, 256, ptrs)
    k(f"s_and_b32 s{sTG}, s2, 7\ns_lshl_b32 s{sTG}, s{sTG}, 2\ns_bfe_u32 s{sX}, s2, 0x20003\ns_add_u32 s{sTG}, s{sTG}, s{sX}\ns_lshr_b32 s{sTL}, s2, 5")
    k(f"v_mov_b32 v{LN}, v1\nv_lshlrev_b32 v{LN16}, 4, v1\nv_lshlrev_b32 v{LN8}, 3, v1\nv_add_u32 v{LN16B}, 4096, v{LN16}")
    for j in range(4):
        k(f"s_add_u32 s{sX}, s3, {j}\ns_and_b32 s{sX}, s{sX}, 3\ns_mul_i32 s{sY}, s{sX}, {tbstride}\nv_add_u32 v{VT+j}, s{sY}, v{LN16}\nv_add_u32 v{VT8+j}, s{sY}, v{LN8}")
        k(f"s_mul_i32 s{sY}, s{sX}, {3*nb*1024}")
        if j == 0: k(f"v_add_u32 v{VRR}, s{sY}, v{LN16}")
        else: k(f"s_add_u32 s{sY}, s{sY}, {(j-1)*nb*1024}\nv_add_u32 v{VRW+j-1}, s{sY}, v{LN16}")
    return end

def wload(r, srd, so, b): return f"buffer_load_dwordx4 {R(r,4)}, v{LN16 if b < 4 else LN16B}, {s(srd,4)}, {so} offen offset:{(b & 3)*1024}"

def red_write(k, acc, nb):
    for j in range(1, 4):
        for b in range(nb): k(f"ds_write_b128 v{VRW+j-1}, {v(acc + (j*nb + b)*4, 4)} offset:{b*1024}")
def red_read(k, acc, nb):
    t = []
    for j in range(1, 4):
        for b in range(nb):
            k(f"ds_read_b128 {v(acc + (j*nb + b)*4, 4)}, v{VRR} offset:{((j-1)*nb + b)*1024}")
        t.append(k.lg)
        if j >= 2:
            k.wait_lg(t[j-2])
            for e in range(nb*4): k(f"v_add_f32 v{acc+e}, v{acc+e}, v{acc+(j-1)*nb*4+e}")
    k.wait_lg(t[2])
    for e in range(nb*4): k(f"v_add_f32 v{acc+e}, v{acc+e}, v{acc+3*nb*4+e}")

def loop_gemm(k, nb, steps, SW, ST, U=4):
    per = nb + 4
    def fr(slot, i): return 256 + (slot*per + i)*4
    def loads(slot):
        o = [f"buffer_load_dwordx4 {R(fr(slot, nb+j),4)}, v{VT+j}, {s(ST,4)}, s{sB} offen" for j in range(4)]
        o += [wload(fr(slot, b), SW, f"s{sA}", b) for b in range(nb)]
        return o
    adv = f"s_add_u32 s{sA}, s{sA}, {nb*1024}\ns_add_u32 s{sB}, s{sB}, 4096"
    k(f"s_mov_b32 s{sA}, 0\ns_mov_b32 s{sB}, 0")
    for sl in range(U-1):
        for x in loads(sl): k(x)
        k(adv)
    yield
    for r in range(nb*16): k(f"v_mov_b32 v{r}, 0")
    L = k.label("loop")
    k(f"s_mov_b32 s{sI}, 0\n.p2align 3\n{L}:")
    for sl in range(U):
        k(f"s_waitcnt vmcnt({(U-2)*per})")
        ld = loads((sl - 1) % U)
        n = 0
        for b in range(nb):
            for j in range(4):
                k(mfma16((j*nb + b)*4, fr(sl, b), fr(sl, nb+j)))
                if ld and n % 2 == 0: k(ld.pop(0))
                n += 1
        assert not ld
        k(adv)
    k(f"s_add_u32 s{sI}, s{sI}, 1\ns_cmp_lt_u32 s{sI}, {steps//U}\ns_cbranch_scc1 {L}")
    k("s_nop 7")
    yield

def tokrow(k, dst):
    k(f"""s_lshl_b32 s{sX}, s{sTG}, 6
    s_lshr_b32 s{sY}, s3, 1
    s_lshl_b32 s{sY}, s{sY}, 5
    s_add_u32 s{sX}, s{sX}, s{sY}
    s_and_b32 s{sY}, s3, 1
    s_lshl_b32 s{sY}, s{sY}, 2
    s_add_u32 s{sX}, s{sX}, s{sY}
    v_bfe_u32 v{dst}, v{LN}, 2, 2
    v_and_b32 v{T0+7}, 3, v{LN}
    v_lshl_add_u32 v{dst}, v{dst}, 3, v{T0+7}
    v_add_u32 v{dst}, s{sX}, v{dst}""")

def unpack(k, d, src):
    k(f"v_lshlrev_b32 v{d}, 16, v{src}\nv_and_b32 v{d+1}, 0xffff0000, v{src}")
def rnd2(k, x0, t):
    k(f"v_cvt_pk_bf16_f32 v{t}, v{x0}, v{x0+1}"); unpack(k, x0, t)

def store_pairs(k, pk, nb, srd, so):
    for p in range(nb // 2): k(f"buffer_store_dwordx4 {v(pk+4*p,4)}, v{LN16}, {s(srd,4)}, {so} offen offset:{1024*p}")
    k(f"buffer_store_dwordx2 {v(pk+2*(nb-1),2)}, v{LN8}, {s(srd,4)}, {so} offen offset:{1024*(nb//2)}")

def k_oproj():
    k = Kern("oproj", 256, lds=61440, vgpr=256, agpr=144)
    end = head(k, dict(x=4, ws=6), 1024, 5)
    SW, ST, SXI, SM, SO1, SO2, SS = 8, 12, 16, 20, 24, 28, 32
    k(f"s_mul_i32 s{sX}, s{sTL}, 655360\ns_mul_i32 s{sY}, s3, 163840\ns_add_u32 s{sX}, s{sX}, s{sY}\ns_add_u32 s{sX}, s{sX}, {WS['WO']}"); k.srd(SW, 6, 163840, f"s{sX}")
    k(f"s_lshl_b32 s{sX}, s{sTG}, 19\ns_lshl_b32 s{sY}, s3, 17\ns_add_u32 s{sX}, s{sX}, s{sY}\ns_add_u32 s{sX}, s{sX}, {WS['CTX']}"); k.srd(ST, 6, 131072, f"s{sX}")
    k.srd(SXI, 4, SZ['x']); k.srd(SM, 6, WSZ['MOD'], WS['MOD'])
    XR, GA, C1 = 96, 112, 132
    tokrow(k, T0)
    k(f"v_lshrrev_b32 v{T0+1}, 4, v{LN}\nv_mul_u32_u24 v{T0}, 1280, v{T0}\nv_lshl_add_u32 v{T0}, v{T0+1}, 3, v{T0}\nv_lshlrev_b32 v{T0+1}, 4, v{T0+1}")
    k(f"s_mul_i32 s{sX}, s{sTL}, 160\ns_mul_i32 s{sY}, s{sTL}, 320\ns_add_u32 s47, s{sY}, {2*2560}\ns_add_u32 s48, s{sY}, {4*2560}")
    for b in range(5):
        k(f"buffer_load_dwordx2 {v(XR+2*b,2)}, v{T0}, {s(SXI,4)}, s{sX} offen offset:{32*b}")
        k(f"buffer_load_dwordx4 {v(GA+4*b,4)}, v{T0+1}, {s(SM,4)}, s47 offen offset:{64*b}")
        k(f"buffer_load_dwordx4 {v(C1+4*b,4)}, v{T0+1}, {s(SM,4)}, s48 offen offset:{64*b}")
    g = loop_gemm(k, 5, 32, SW, ST); next(g)
    k(f"s_lshl_b32 s{sX}, s{sTG}, 3\ns_add_u32 s{sX}, s{sX}, s{sTL}\ns_lshl_b32 s{sX}, s{sX}, 2\ns_add_u32 s{sX}, s{sX}, s3\ns_mul_i32 s{sX}, s{sX}, 2560")
    k(f"s_add_u32 s{sY}, s{sX}, {WS['X1']}"); k.srd(SO1, 6, 2560, f"s{sY}")
    k(f"s_add_u32 s{sY}, s{sX}, {WS['X1S']}"); k.srd(SO2, 6, 2560, f"s{sY}")
    k(f"s_lshl_b32 s{sX}, s{sTG}, 2\ns_add_u32 s{sX}, s{sX}, s3\ns_lshl_b32 s{sX}, s{sX}, 3\ns_add_u32 s{sX}, s{sX}, s{sTL}\ns_lshl_b32 s{sX}, s{sX}, 7\ns_add_u32 s{sX}, s{sX}, {WS['ST1']}"); k.srd(SS, 6, 128, f"s{sX}")
    next(g)
    red_write(k, 0, 5); k("s_waitcnt lgkmcnt(0)\ns_barrier"); red_read(k, 0, 5)
    P1, P2, S1 = 160, 176, 192
    k(f"v_mov_b32 v{S1}, 0\nv_mov_b32 v{S1+1}, 0")
    for e in range(0, 20, 2):
        rnd2(k, e, T0)
        k(f"v_mul_f32 v{e}, v{e}, v{GA+e}\nv_mul_f32 v{e+1}, v{e+1}, v{GA+e+1}"); rnd2(k, e, T0)
        unpack(k, T0, XR + e//2)
        k(f"v_add_f32 v{e}, v{e}, v{T0}\nv_add_f32 v{e+1}, v{e+1}, v{T0+1}"); rnd2(k, e, P1 + e//2)
        k(f"v_add_f32 v{S1}, v{S1}, v{e}\nv_fmac_f32 v{S1+1}, v{e}, v{e}\nv_add_f32 v{S1}, v{S1}, v{e+1}\nv_fmac_f32 v{S1+1}, v{e+1}, v{e+1}")
        k(f"v_mul_f32 v{e}, v{e}, v{C1+e}\nv_mul_f32 v{e+1}, v{e+1}, v{C1+e+1}\nv_cvt_pk_bf16_f32 v{P2+e//2}, v{e}, v{e+1}")
    store_pairs(k, P2, 5, SO2, "0")
    for b in range(5): k(f"buffer_store_dwordx2 {v(P1+2*b,2)}, v{LN8}, {s(SO1,4)}, 0 offen offset:{512*b}")
    k(f"""v_permlane32_swap_b32 v{S1}, v{S1+1}
    v_and_b32 v{T0}, 15, v{LN}
    v_lshrrev_b32 v{T0+1}, 5, v{LN}
    v_add_f32 v{S1}, v{S1}, v{S1+1}
    v_mov_b32 v{S1+1}, v{S1}
    v_lshlrev_b32 v{T0}, 2, v{T0}
    v_lshl_add_u32 v{T0}, v{T0+1}, 6, v{T0}
    v_permlane16_swap_b32 v{S1}, v{S1+1}
    s_nop 1
    v_add_f32 v{S1}, v{S1}, v{S1+1}
    buffer_store_dword v{S1}, v{T0}, {s(SS,4)}, 0 offen""")
    k(f"{end}:\ns_endpgm")
    return k

GC0 = -2 * 1.4426950408889634 * (2 / 3.141592653589793) ** 0.5
def gelu(k, regs, t):
    for i in range(0, len(regs), 4):
        rr = regs[i:i+4]
        for n, x in enumerate(rr): k(f"v_mul_f32 v{t+n}, v{x}, v{x}")
        for n, x in enumerate(rr): k(f"v_fma_f32 v{t+n}, v{t+n}, s50, v{t+4}")
        for n, x in enumerate(rr): k(f"v_mul_f32 v{t+n}, v{t+n}, v{x}")
        for n, x in enumerate(rr): k(f"v_exp_f32 v{t+n}, v{t+n}")
        for n, x in enumerate(rr): k(f"v_add_f32 v{t+n}, 1.0, v{t+n}")
        for n, x in enumerate(rr): k(f"v_rcp_f32 v{t+n}, v{t+n}")
        for n, x in enumerate(rr): k(f"v_mul_f32 v{x}, v{x}, v{t+n}")

def stats_regs(k, d, n_elem):
    for perm in ("quad_perm:[1,0,3,2]", "quad_perm:[2,3,0,1]", "row_half_mirror"):
        for r in range(4): k(f"v_add_f32_dpp v{d+r}, v{d+r}, v{d+r} {perm} row_mask:0xf bank_mask:0xf")
    for r in range(4): k(f"v_mov_b32 v{d+4+r}, v{d+r}")
    for r in range(4): k(f"v_mov_b32_dpp v{d+4+r}, v{d+r} row_ror:8 row_mask:0xf bank_mask:0x3")
    for r in range(4): k(f"v_mov_b32_dpp v{d+r}, v{d+r} row_ror:8 row_mask:0xf bank_mask:0xc")
    fin_stats(k, [(d+r, d+4+r) for r in range(4)], n_elem)
def fin_stats(k, prs, n_elem):
    for m, q in prs: k(f"v_mul_f32 v{m}, {fl(1/n_elem)}, v{m}\nv_mul_f32 v{q}, {fl(1/n_elem)}, v{q}")
    for m, q in prs: k(f"v_fma_f32 v{q}, -v{m}, v{m}, v{q}\nv_max_f32 v{q}, 0, v{q}\nv_add_f32 v{q}, {fl(1e-5)}, v{q}\nv_rsq_f32 v{q}, v{q}")
    k("s_nop 0")

def k_win():
    k = Kern("win", 256, lds=86016, vgpr=256, agpr=256)
    end = head(k, dict(ws=6), 2560, 7)
    SW, ST, SS, SU, SZ1, SZ2, SS2 = 8, 12, 16, 20, 24, 28, 32
    k(f"s_mul_i32 s{sX}, s{sTL}, 143360\ns_mul_i32 s{sY}, s3, 35840\ns_add_u32 s{sX}, s{sX}, s{sY}\ns_add_u32 s{sX}, s{sX}, {WS['WIN']}"); k.srd(SW, 6, 8*143360 + 35840, f"s{sX}")
    k(f"s_mul_i32 s{sX}, s{sTG}, 81920\ns_mul_i32 s{sY}, s3, 20480\ns_add_u32 s{sX}, s{sX}, s{sY}\ns_add_u32 s{sX}, s{sX}, {WS['X1S']}"); k.srd(ST, 6, 20480, f"s{sX}")
    TK, WF = 256, 256 + 80
    def tf(st, j): return TK + (st*4 + j)*4
    def wf(st, b): return WF + ((st % 6)*7 + b)*4
    k("s_movk_i32 s47, 10240")
    tick = {}
    def wl(st):
        hf, s5 = (1, st) if st < 5 else (0, st - 5)
        return [f"s_mov_b32 s{sA}, {hf*8*143360 + s5*7168}"], [wload(wf(st, b), SW, f"s{sA}", b) for b in range(7)]
    for st in range(5):
        for j in range(4):
            if st < 4: k(f"buffer_load_dwordx4 {R(tf(st,j),4)}, v{VT+j}, {s(ST,4)}, {'0' if st < 2 else 's47'} offen offset:{1024*(st&1)}")
            else: k(f"buffer_load_dwordx2 {R(tf(st,j),2)}, v{VT8+j}, {s(ST,4)}, 0 offen offset:2048\nbuffer_load_dwordx2 {R(tf(st,j)+2,2)}, v{VT8+j}, {s(ST,4)}, s47 offen offset:2048")
        sc, ld = wl(st)
        for x in sc + ld: k(x)
        tick[st] = k.vm
    k(f"s_lshl_b32 s{sX}, s{sTG}, 2\ns_add_u32 s{sX}, s{sX}, s3\ns_lshl_b32 s{sX}, s{sX}, 10\ns_add_u32 s{sY}, s{sX}, {WS['ST1']}"); k.srd(SS, 6, 1024, f"s{sY}")
    k(f"s_lshl_b32 s{sY}, s{sTL}, 7\ns_add_u32 s{sY}, s{sY}, s{sX}\ns_add_u32 s{sY}, s{sY}, {WS['ST2']}"); k.srd(SS2, 6, 128, f"s{sY}")
    k(f"s_mul_i32 s{sX}, s{sTL}, 448\ns_add_u32 s{sX}, s{sX}, {WS['UV']}"); k.srd(SU, 6, 3*3584 + 448, f"s{sX}")
    k(f"s_lshl_b32 s{sX}, s{sTG}, 3\ns_add_u32 s{sX}, s{sX}, s{sTL}\ns_lshl_b32 s{sX}, s{sX}, 2\ns_add_u32 s{sX}, s{sX}, s3\ns_mul_i32 s{sX}, s{sX}, 3584\ns_add_u32 s{sX}, s{sX}, {WS['Z1']}"); k.srd(SZ1, 6, 3584, f"s{sX}")
    k(f"s_lshl_b32 s{sX}, s{sTL}, 6\ns_lshl_b32 s{sY}, s{sTG}, 1\ns_add_u32 s{sX}, s{sX}, s{sY}\ns_lshr_b32 s{sY}, s3, 1\ns_add_u32 s{sX}, s{sX}, s{sY}\ns_mul_i32 s{sX}, s{sX}, 7168\ns_add_u32 s{sX}, s{sX}, {WS['Z2']}"); k.srd(SZ2, 6, 7168, f"s{sX}")
    k(f"s_mov_b32 s50, {fl(GC0*0.044715)}\ns_movk_i32 s51, 3584\ns_movk_i32 s52, 7168\ns_movk_i32 s53, 10752")
    A2, A1 = 0, 112
    for st in range(10):
        k.wait_vm(tick[st])
        sc, ld = wl(st + 5) if st < 5 else ([], [])
        for x in sc: k(x)
        n = 0
        for b in range(7):
            for j in range(4):
                z = 'z' if st % 5 == 0 else None
                if st < 5: k(mfma16(A2 + (j*7+b)*4, tf(st, j), wf(st, b), z))
                else: k(mfma16(A1 + (j*7+b)*4, wf(st, b), tf(st-5, j), z))
                if ld and n % 3 == 0:
                    k(ld.pop(0)); tick[st+5] = k.vm
                n += 1
        if st == 5: red_write(k, A2, 7)
    k("s_waitcnt lgkmcnt(0)\ns_barrier")
    red_read(k, A2, 7)
    k("s_barrier")
    red_write(k, A1, 7)
    ST_, U2, V2, PK = 28, 40, 48, 64
    k(f"""v_and_b32 v{T0}, 7, v{LN}
    v_bfe_u32 v{T0+1}, v{LN}, 3, 1
    v_lshrrev_b32 v{T0+2}, 4, v{LN}
    v_lshlrev_b32 v{T0}, 7, v{T0}
    v_lshl_add_u32 v{T0}, v{T0+1}, 6, v{T0}
    v_lshl_add_u32 v{T0}, v{T0+2}, 4, v{T0}
    buffer_load_dwordx4 {v(ST_,4)}, v{T0}, {s(SS,4)}, 0 offen
    v_and_b32 v{T0+3}, 15, v{LN}
    v_lshlrev_b32 v{T0+3}, 2, v{T0+3}""")
    for b in range(7):
        k(f"buffer_load_dword v{U2+b}, v{T0+3}, {s(SU,4)}, s51 offen offset:{64*b}\nbuffer_load_dword v{V2+b}, v{T0+3}, {s(SU,4)}, s53 offen offset:{64*b}")
    k(f"v_lshl_add_u32 v{T0+3}, v{T0+2}, 8, v{T0+3}")
    M1 = 56
    for i in range(4): k(f"buffer_load_dword v{M1+i}, v{T0+3}, {s(SS,4)}, 0 offen offset:{64*i}")
    k(f"v_mov_b32 v{T0+8}, {fl(GC0)}")
    k("s_waitcnt vmcnt(0)")
    stats_regs(k, ST_, 640)
    for b in range(7):
        for r in range(4):
            x = A2 + b*4 + r
            k(f"v_fma_f32 v{x}, -v{ST_+r}, v{U2+b}, v{x}\nv_fma_f32 v{x}, v{x}, v{ST_+4+r}, v{V2+b}")
    gelu(k, list(range(A2, A2+28)), T0+4)
    SM = 80
    for r in range(4):
        k(f"v_mov_b32 v{SM+r}, v{A2+r}\nv_mul_f32 v{SM+4+r}, v{A2+r}, v{A2+r}")
        for b in range(1, 7): k(f"v_add_f32 v{SM+r}, v{SM+r}, v{A2+b*4+r}\nv_fmac_f32 v{SM+4+r}, v{A2+b*4+r}, v{A2+b*4+r}")
    for e in range(14): k(f"v_cvt_pk_bf16_f32 v{PK+e}, v{A2+2*e}, v{A2+2*e+1}")
    k(f"s_and_b32 s{sX}, s3, 1\ns_lshl_b32 s{sX}, s{sX}, 3")
    for b in range(7): k(f"buffer_store_dwordx2 {v(PK+2*b,2)}, v{LN16 if b < 4 else LN16B}, {s(SZ2,4)}, s{sX} offen offset:{(b&3)*1024}")
    row16_sum(k, list(range(SM, SM+8)))
    k(f"v_lshlrev_b32 v{T0+1}, 4, v{T0+2}")
    k(f"buffer_store_dwordx4 {v(SM,4)}, v{T0+1}, {s(SS2,4)}, 0 offen\nbuffer_store_dwordx4 {v(SM+4,4)}, v{T0+1}, {s(SS2,4)}, 0 offen offset:64")
    U1, V1 = 0, 28 if False else 88
    k(f"v_add_f32 v{M1}, v{M1}, v{M1+2}\nv_add_f32 v{M1+1}, v{M1+1}, v{M1+3}")
    for sw in ("v_permlane32_swap_b32", "v_permlane16_swap_b32"):
        k(f"v_mov_b32 v{M1+2}, v{M1}\nv_mov_b32 v{M1+3}, v{M1+1}\ns_nop 1\n{sw} v{M1}, v{M1+2}\n{sw} v{M1+1}, v{M1+3}\ns_nop 1\nv_add_f32 v{M1}, v{M1}, v{M1+2}\nv_add_f32 v{M1+1}, v{M1+1}, v{M1+3}")
    fin_stats(k, [(M1, M1+1)], 640)
    V1 = 28
    for b in range(7):
        k(f"buffer_load_dwordx4 {v(U1+4*b,4)}, v{T0+1}, {s(SU,4)}, 0 offen offset:{64*b}\nbuffer_load_dwordx4 {v(V1+4*b,4)}, v{T0+1}, {s(SU,4)}, s52 offen offset:{64*b}")
    k("s_waitcnt lgkmcnt(0)\ns_barrier")
    red_read(k, A1, 7)
    k("s_waitcnt vmcnt(0)")
    for e in range(28): k(f"v_fma_f32 v{A1+e}, -v{M1}, v{U1+e}, v{A1+e}\nv_fma_f32 v{A1+e}, v{A1+e}, v{M1+1}, v{V1+e}")
    gelu(k, list(range(A1, A1+28)), T0+4)
    for e in range(14): k(f"v_cvt_pk_bf16_f32 v{PK+e}, v{A1+2*e}, v{A1+2*e+1}")
    for b in range(7): k(f"buffer_store_dwordx2 {v(PK+2*b,2)}, v{LN8}, {s(SZ1,4)}, 0 offen offset:{512*b}")
    k(f"{end}:\ns_endpgm")
    return k

def k_z2n():
    k = Kern("z2n", 128, vgpr=128)
    end = prologue(k, 128, dict(ws=6))
    k("s_lshl_b32 s20, s2, 2\ns_add_u32 s20, s20, s3\ns_mul_i32 s21, s20, 7168\ns_add_u32 s21, s21, %d" % WS['Z2']); k.srd(8, 6, 7168, "s21")
    k("s_and_b32 s21, s20, 63\ns_lshl_b32 s21, s21, 11\ns_add_u32 s21, s21, %d" % WS['ST2']); k.srd(12, 6, 2048, "s21")
    k("""v_lshlrev_b32 v2, 4, v1
    v_add_u32 v3, 4096, v2
    v_and_b32 v4, 7, v1
    v_bfe_u32 v5, v1, 3, 1
    v_lshrrev_b32 v6, 4, v1
    v_lshlrev_b32 v4, 7, v4
    v_lshl_add_u32 v4, v5, 6, v4
    v_lshl_add_u32 v4, v6, 4, v4
    buffer_load_dwordx4 v[8:11], v4, s[12:15], 0 offen
    buffer_load_dwordx4 v[16:19], v4, s[12:15], 0 offen offset:1024""")
    for b in range(7): k(f"buffer_load_dwordx4 {v(32+4*b,4)}, v{2 if b < 4 else 3}, s[8:11], 0 offen offset:{(b&3)*1024}")
    k("s_waitcnt vmcnt(0)")
    stats_regs(k, 8, 864); stats_regs(k, 16, 864)
    for b in range(7):
        for e in range(4):
            st = 8 + 8*(e >> 1) + 2*(e & 1)
            unpack(k, 24, 32+4*b+e)
            k(f"v_sub_f32 v24, v24, v{st}\nv_sub_f32 v25, v25, v{st+1}\nv_mul_f32 v24, v24, v{st+4}\nv_mul_f32 v25, v25, v{st+5}\nv_cvt_pk_bf16_f32 v{32+4*b+e}, v24, v25")
        k(f"buffer_store_dwordx4 {v(32+4*b,4)}, v{2 if b < 4 else 3}, s[8:11], 0 offen offset:{(b&3)*1024}")
    k(f"{end}:\ns_endpgm")
    return k

def k_wsp():
    k = Kern("wsp", 256, lds=86016, vgpr=256, agpr=176)
    end = head(k, dict(bsp=4, ws=6), 1024, 7)
    SW, ST, SB, SZ1, SO = 8, 12, 16, 20, 24
    k(f"s_mul_i32 s{sX}, s{sTL}, 458752\ns_mul_i32 s{sY}, s3, 114688\ns_add_u32 s{sX}, s{sX}, s{sY}\ns_add_u32 s{sX}, s{sX}, {WS['Z2']}"); k.srd(SW, 6, 114688, f"s{sX}")
    k(f"s_lshl_b32 s{sX}, s{sTG}, 18\ns_lshl_b32 s{sY}, s3, 16\ns_add_u32 s{sX}, s{sX}, s{sY}\ns_add_u32 s{sX}, s{sX}, {WS['WSP']}"); k.srd(ST, 6, 65536, f"s{sX}")
    k.srd(SB, 4, SZ['bsp'])
    k(f"s_lshl_b32 s{sX}, s{sTG}, 3\ns_add_u32 s{sX}, s{sX}, s{sTL}\ns_lshl_b32 s{sX}, s{sX}, 2\ns_add_u32 s{sX}, s{sX}, s3\ns_mul_i32 s{sX}, s{sX}, 3584")
    k(f"s_add_u32 s{sY}, s{sX}, {WS['Z1']}"); k.srd(SZ1, 6, 3584, f"s{sY}")
    k(f"s_add_u32 s{sY}, s{sX}, {WS['U']}"); k.srd(SO, 6, 3584, f"s{sY}")
    Z, BS, PK = 128, 144, 160
    tokrow(k, T0)
    k(f"v_lshlrev_b32 v{T0}, 1, v{T0}\nbuffer_load_ushort v{BS}, v{T0}, {s(SB,4)}, 0 offen")
    for b in range(7): k(f"buffer_load_dwordx2 {v(Z+2*b,2)}, v{LN8}, {s(SZ1,4)}, 0 offen offset:{512*b}")
    g = loop_gemm(k, 7, 16, SW, ST); next(g); next(g)
    red_write(k, 0, 7); k("s_waitcnt lgkmcnt(0)\ns_barrier"); red_read(k, 0, 7)
    k(f"v_lshlrev_b32 v{BS}, 16, v{BS}")
    for e in range(0, 28, 2):
        unpack(k, T0, Z + e//2)
        k(f"v_add_f32 v{e}, v{e}, v{BS}\nv_add_f32 v{e+1}, v{e+1}, v{BS}\nv_mul_f32 v{e}, v{e}, v{T0}\nv_mul_f32 v{e+1}, v{e+1}, v{T0+1}\nv_cvt_pk_bf16_f32 v{PK+e//2}, v{e}, v{e+1}")
    store_pairs(k, PK, 7, SO, "0")
    k(f"{end}:\ns_endpgm")
    return k

def k_wout():
    k = Kern("wout", 256, lds=61440, vgpr=256, agpr=256)
    end = head(k, dict(out=4, ws=6), 3584, 5)
    SW, ST, SM, SX1, SO = 8, 12, 16, 20, 24
    k(f"s_mul_i32 s{sX}, s{sTL}, 143360\ns_mul_i32 s{sY}, s3, 35840\ns_add_u32 s{sX}, s{sX}, s{sY}\ns_add_u32 s{sX}, s{sX}, {WS['WOUT']}"); k.srd(SW, 6, 35840, f"s{sX}")
    k(f"s_mul_i32 s{sX}, s{sTG}, 114688\ns_mul_i32 s{sY}, s3, 28672\ns_add_u32 s{sX}, s{sX}, s{sY}\ns_add_u32 s{sX}, s{sX}, {WS['U']}"); k.srd(ST, 6, 28672, f"s{sX}")
    def fr(st, i): return 256 + (st*9 + i)*4
    k("s_movk_i32 s47, 14336")
    tick = {}
    def lds_(st):
        o = []
        for j in range(4):
            if st < 6: o.append(f"buffer_load_dwordx4 {R(fr(st,5+j),4)}, v{VT+j}, {s(ST,4)}, {'0' if st < 3 else 's47'} offen offset:{1024*(st%3)}")
            else: o += [f"buffer_load_dwordx2 {R(fr(st,5+j),2)}, v{VT8+j}, {s(ST,4)}, 0 offen offset:3072", f"buffer_load_dwordx2 {R(fr(st,5+j)+2,2)}, v{VT8+j}, {s(ST,4)}, s47 offen offset:3072"]
        o.append(f"s_movk_i32 s{sA}, {st*5120}")
        o += [wload(fr(st, b), SW, f"s{sA}", b) for b in range(5)]
        return o
    for st in range(6):
        for x in lds_(st): k(x)
        tick[st] = k.vm
    k.srd(SM, 6, WSZ['MOD'], WS['MOD']); k.srd(SO, 4, SZ['out'])
    k(f"s_lshl_b32 s{sX}, s{sTG}, 3\ns_add_u32 s{sX}, s{sX}, s{sTL}\ns_lshl_b32 s{sX}, s{sX}, 2\ns_add_u32 s{sX}, s{sX}, s3\ns_mul_i32 s{sX}, s{sX}, 2560\ns_add_u32 s{sX}, s{sX}, {WS['X1']}"); k.srd(SX1, 6, 2560, f"s{sX}")
    tokrow(k, T0)
    k(f"v_lshrrev_b32 v{T0+1}, 4, v{LN}\nv_mul_u32_u24 v{T0}, 1280, v{T0}\nv_lshl_add_u32 v{T0}, v{T0+1}, 3, v{T0}\nv_lshlrev_b32 v{T0+1}, 4, v{T0+1}")
    k(f"s_mul_i32 s48, s{sTL}, 160\ns_mul_i32 s49, s{sTL}, 320\ns_add_u32 s49, s49, {5*2560}")
    XR, GB = 96, 112
    extra = lds_(6)
    ex2 = []
    for b in range(5):
        ex2 += [f"buffer_load_dwordx2 {v(XR+2*b,2)}, v{LN8}, {s(SX1,4)}, 0 offen offset:{512*b}", f"buffer_load_dwordx4 {v(GB+4*b,4)}, v{T0+1}, {s(SM,4)}, s49 offen offset:{64*b}"]
    for st in range(7):
        k.wait_vm(tick[st])
        for b in range(5):
            for j in range(4):
                k(mfma16((j*5+b)*4, fr(st, b), fr(st, 5+j), 'z' if st == 0 else None))
                if st == 0 and extra:
                    k(extra.pop(0)); tick[6] = k.vm
                if st == 1 and ex2: k(ex2.pop(0))
    k("s_nop 7")
    red_write(k, 0, 5); k("s_waitcnt lgkmcnt(0)\ns_barrier"); red_read(k, 0, 5)
    k("s_waitcnt vmcnt(0)")
    PK = 160
    for e in range(0, 20, 2):
        unpack(k, T0+2, XR + e//2)
        k(f"v_fma_f32 v{e}, v{e}, v{GB+e}, v{T0+2}\nv_fma_f32 v{e+1}, v{e+1}, v{GB+e+1}, v{T0+3}\nv_cvt_pk_bf16_f32 v{PK+e//2}, v{e}, v{e+1}")
    for b in range(5): k(f"buffer_store_dwordx2 {v(PK+2*b,2)}, v{T0}, {s(SO,4)}, s48 offen offset:{32*b}")
    k(f"{end}:\ns_endpgm")
    return k

def kernels(): return [k_oproj(), k_win(), k_z2n(), k_wsp(), k_wout()]
```

```python
import sys
from core import *
import small, kv, attn, tail
def base(): return [small.k_mod(), small.k_h(), small.k_pre(), small.k_uv(), kv.k_kv(), attn.k_attn()] + tail.kernels()
def empty(n=256):
    k = Kern("empty", n, vgpr=8); k("s_endpgm"); return k
ks = base()
open("e0.s", "w").write(build(ks))
open("e8end.s", "w").write(build(ks + [empty()]*8))
open("e8beg.s", "w").write(build([empty()]*8 + ks))
d = {k.name: k for k in ks}
open("rattn.s", "w").write(build(ks[:6] + [d['attn']] + ks[6:]))
open("rkv.s", "w").write(build(ks[:5] + [d['kv']] + ks[5:]))
open("roproj.s", "w").write(build(ks[:7] + [d['oproj']] + ks[7:]))
```
